```python
import torch

def _softmax(x, axis=-1):
    return torch.softmax(x, dim=axis)
def _gelu(x):
    return torch.nn.functional.gelu(x, approximate="tanh")
def _silu(x):
    return torch.nn.functional.silu(x)
def _sigmoid(x):
    return torch.sigmoid(x)
def _layernorm(x, axis=-1, eps=1e-5):
    m = x.mean(dim=axis, keepdim=True)
    v = x.var(dim=axis, keepdim=True, unbiased=False)
    return (x - m) / torch.sqrt(v + eps)
def _scatter_add(tgt, idx, src, axis=0):
    return tgt.clone().index_add_(axis, idx, src)
def _segment_sum(src, seg, n):
    out = torch.zeros((n,) + src.shape[1:], dtype=src.dtype)
    return out.index_add_(0, seg, src)
def _pad(x, pw):
    flat = tuple(v for pair in reversed(pw) for v in pair)
    return torch.nn.functional.pad(x, flat)

kernel_name = 'standalone__seq2seq_rnn_t_joint__speech'

def setup_inputs():

    _w = (lambda a: (lambda t: t.to(torch.bfloat16) if t.is_floating_point() else t)(torch.as_tensor(a)))
    B, T, D, K = 2, 4000, 512, 3
    U = 8
    sc = (1.0 / (K * D)) ** 0.5
    sd = (1.0 / D) ** 0.5
    return {
        "x": _w((lambda *s: torch.randn(*s, dtype=torch.bfloat16) * 0.2)(B, T, D) * 0.5),
        "w1": _w((lambda *s: torch.randn(*s, dtype=torch.bfloat16) * 3.2)(K, D, D) * sc),
        "w2": _w((lambda *s: torch.randn(*s, dtype=torch.bfloat16) * 3.2)(K, D, D) * sc),
        "g": _w((lambda *s: torch.randn(*s, dtype=torch.bfloat16) * 3.2)(B, U, D) * 0.5),
        "w_f": _w((lambda *s: torch.randn(*s, dtype=torch.bfloat16) * 3.2)(D, D) * sd),
        "w_g": _w((lambda *s: torch.randn(*s, dtype=torch.bfloat16) * 3.2)(D, D) * sd),
        "w_o": _w((lambda *s: torch.randn(*s, dtype=torch.bfloat16) * 3.2)(D, D) * sd),
    }

def reference(x, w1, w2, g, w_f, w_g, w_o):
    B, T, D = x.shape
    K = w1.shape[0]
    pad = K // 2
    xp = _pad(x, ((0,0),(pad,pad),(0,0)))
    h = torch.zeros_like(x)
    for i in range(K):
        h = h + torch.einsum("btc,cd->btd", xp[:, i:i+T, :], w1[i])
    h = _gelu(h)[:, ::2, :]
    T1 = h.shape[1]
    hp = _pad(h, ((0,0),(pad,pad),(0,0)))
    f = torch.zeros_like(h)
    for i in range(K):
        f = f + torch.einsum("btc,cd->btd", hp[:, i:i+T1, :], w2[i])
    f = _gelu(f)[:, ::2, :]
    fe = torch.einsum("btd,de->bte", f, w_f)
    ge = torch.einsum("bud,de->bue", g, w_g)
    j = torch.tanh(fe[:, :, None, :] + ge[:, None, :, :])
    return torch.einsum("btud,dv->btuv", j, w_o)
```

```python
class Asm:
    def __init__(self):
        self.lines = []
        self.nlab = 0
    def __call__(self, s=""):
        for l in s.split("\n"):
            self.lines.append(l)
    def label(self, base="L"):
        self.nlab += 1
        return f"{base}_{self.nlab}"
    def text(self):
        return "\n".join(self.lines) + "\n"

def header(launches):
    s = ""
    for k, g, b, lds in launches:
        kk = f"kernel={k} " if k else ""
        s += f"; @launch {kk}grid=({g},1,1) block=({b},1,1) lds={lds}\n"
    s += '.amdgcn_target "amdgcn-amd-amdhsa--gfx950"\n.text\n'
    return s

def kernel_begin(name):
    return f".globl {name}\n.p2align 8\n.type {name},@function\n{name}:\n"

def descriptor(name, vgpr, accum, sgpr=102):
    return f""".section .rodata,"a"
.p2align 6
.amdhsa_kernel {name}
  .amdhsa_next_free_vgpr {vgpr}
  .amdhsa_next_free_sgpr {sgpr}
  .amdhsa_accum_offset {accum}
  .amdhsa_group_segment_fixed_size 0
  .amdhsa_kernarg_size 80
  .amdhsa_user_sgpr_count 2
  .amdhsa_user_sgpr_kernarg_segment_ptr 1
  .amdhsa_system_sgpr_workgroup_id_x 1
  .amdhsa_float_denorm_mode_32 3
.end_amdhsa_kernel
.text
"""
```

```python
import sys, struct
from asmlib import *
KN = "standalone__seq2seq_rnn_t_joint__speech_kernel"

def fbits(x):
    return "0x%08x" % struct.unpack("<I", struct.pack("<f", x))[0]

LOG2E = 1.4426950408889634
GC0 = -2.0 * LOG2E * 0.7978845608028654
GC1 = GC0 * 0.044715
TC = 2.0 * LOG2E

WS_H, WS_F, WS_FE, WS_GE, WS_FL = 0, 0x20000, 0x30000, 0x40000, 0x44000
WS_STAMP = 0x48000
SX, SW1, SW2, SWF, SWG, SWO, SG, SOUT, SWS, SDBG = 8, 12, 16, 20, 24, 28, 32, 36, 40, 44
def srd(b): return f"s[{b}:{b+3}]"
sW, sJ, sKC, sC, sQ, sB, sLW, sROT = 4, 5, 6, 7, 48, 49, 50, 51
sT0, sT1, sT2, sT3 = 3, 52, 53, 54
sA1, sB1 = 55, 56
sZM = 58
sCNT = 57
sGC0, sGC1, sTC = 60, 61, 62
sSLOW = 63
STAMP0 = 64
C1_A = [0, 57344]; C1_B = [32768, 90112]
C2_W = [114688, 139264, 0, 24576]
C2_H = [49152, 65536, 81920, 98304]

class Gen:
    def __init__(self, stamps=False, rotj=1, rotc=2, xnt=False, stop=None):
        self.a = Asm(); self.stamps = stamps; self.nst = {"c": 0, "l": 0}
        self.rotj, self.rotc, self.xnt, self.stop = rotj, rotc, xnt, stop
        self.names = {"c": [], "l": []}
    def stamp(self, role, name):
        if not self.stamps: return
        i = self.nst[role]; self.nst[role] += 1
        assert i < 16
        self.names[role].append(name)
        self.a(f"s_memrealtime s[{STAMP0+2*i}:{STAMP0+2*i+1}]")

    def prologue(self):
        a = self.a
        a(f"""
    s_cmp_ge_u32 s2, 256
    s_cbranch_scc1 L_end
    s_load_dwordx16 s[64:79], s[0:1], 0      ; x w1 w2 g w_f w_g w_o out
    s_load_dwordx4 s[80:83], s[0:1], 64
    v_lshrrev_b32 v1, 6, v0
    v_and_b32 v0, 63, v0                     ; v0 = lane
    v_readfirstlane_b32 s{sW}, v1
    s_and_b32 s{sT0}, s2, 7
    s_lshr_b32 s{sT1}, s2, 3
    s_and_b32 s{sJ}, s{sT1}, 7
    s_lshr_b32 s{sKC}, s{sT1}, 3
    s_lshl_b32 s{sC}, s{sT0}, 2
    s_add_u32 s{sC}, s{sC}, s{sKC}
    s_lshr_b32 s{sB}, s{sC}, 4
    s_and_b32 s{sQ}, s{sC}, 15
    s_mul_i32 s{sT0}, s{sJ}, {self.rotj}
    s_mul_i32 s{sT1}, s{sKC}, {self.rotc}
    s_add_u32 s{sROT}, s{sT0}, s{sT1}
    s_mov_b32 s{sGC0}, {fbits(GC0)}
    s_mov_b32 s{sGC1}, {fbits(GC1)}
    s_mov_b32 s{sTC}, {fbits(TC)}
    s_waitcnt lgkmcnt(0)
    s_mul_i32 s{sT0}, s{sB}, 4096000
    s_add_u32 s{SX}, s64, s{sT0}
    s_addc_u32 s{SX+1}, s65, 0
    s_mov_b32 s{SX+2}, 4096000
    s_mov_b32 s{SX+3}, 0x20000
    """)
        for r, src, n in [(SW1, 66, 1572864), (SW2, 68, 1572864), (SWF, 72, 524288), (SWG, 74, 524288), (SWO, 76, 524288)]:
            a(f"s_mov_b32 s{r}, s{src}\ns_mov_b32 s{r+1}, s{src+1}\ns_mov_b32 s{r+2}, {n}\ns_mov_b32 s{r+3}, 0x20000")
        a(f"""
    s_lshl_b32 s{sT0}, s{sB}, 13
    s_add_u32 s{SG}, s70, s{sT0}
    s_addc_u32 s{SG+1}, s71, 0
    s_mov_b32 s{SG+2}, 8192
    s_mov_b32 s{SG+3}, 0x20000
    s_mul_i32 s{sT0}, s{sB}, 1000
    s_mul_i32 s{sT1}, s{sQ}, 63
    s_add_u32 s{sT0}, s{sT0}, s{sT1}
    s_lshl_b32 s{sT0}, s{sT0}, 13
    s_add_u32 s{SOUT}, s78, s{sT0}
    s_addc_u32 s{SOUT+1}, s79, 0
    s_mov_b32 s{SOUT+2}, {63*8192}
    s_cmp_eq_u32 s{sQ}, 15
    s_cselect_b32 s{SOUT+2}, {55*8192}, s{SOUT+2}
    s_mov_b32 s{SOUT+3}, 0x20000
    s_lshl_b32 s{sT0}, s{sC}, 19
    s_add_u32 s{SWS}, s82, s{sT0}
    s_addc_u32 s{SWS+1}, s83, 0
    s_mov_b32 s{SWS+2}, 0x80000
    s_mov_b32 s{SWS+3}, 0x20000
    s_mov_b32 s{SDBG}, s80
    s_mov_b32 s{SDBG+1}, s81
    s_mov_b32 s{SDBG+2}, 256
    s_mov_b32 s{SDBG+3}, 0x20000
    """)
        if self.stamps:
            a(f"s_memrealtime s[{STAMP0}:{STAMP0+1}]")
            self.nst = {"c": 1, "l": 1}; self.names = {"c": ["setup"], "l": ["setup"]}
        a(f"s_cmp_ge_u32 s{sW}, 4\ns_cbranch_scc1 L_loader")

    def stream(self, steps, R, bar_at, setregs, setsz, drain_before_bar, first_bar=True, extra=None):
        a = self.a; n = len(steps); NS = R + 1
        base = lambda i: setregs + (i % NS) * setsz
        nreads = [len(steps[i][0](0)) for i in range(n)]
        def bar(i):
            if i in bar_at:
                if drain_before_bar and i > 0: a("s_waitcnt lgkmcnt(0)")
                a("s_barrier")
        for i in range(min(R, n)):
            bar(i)
            for r in steps[i][0](base(i)): a(r)
        for i in range(n):
            pend = sum(nreads[i+1:min(i+R, n)])
            assert pend <= 15
            a(f"s_waitcnt lgkmcnt({pend})")
            mf = steps[i][1](base(i))
            rd = steps[i+R][0](base(i+R)) if i+R < n else []
            k = 0
            for m, ins in enumerate(mf):
                a(ins)
                if m == 0 and i+R < n: bar(i+R)
                k2 = len(rd)*(m+1)//len(mf)
                for r in rd[k:k2]: a(r)
                k = k2
                if extra: extra(i, m)

    def gelu_pack(self, acc, tmp, out):
        a = self.a
        for h in range(0, 16, 4):
            r = [acc+h+i for i in range(4)]; t = [tmp+i for i in range(4)]
            for i in range(4): a(f"v_mul_f32 v{t[i]}, v{r[i]}, v{r[i]}")
            for i in range(4): a(f"v_fma_f32 v{t[i]}, v{t[i]}, s{sGC1}, v{tmp+4}")
            for i in range(4): a(f"v_mul_f32 v{t[i]}, v{t[i]}, v{r[i]}")
            for i in range(4): a(f"v_exp_f32 v{t[i]}, v{t[i]}")
            for i in range(4): a(f"v_add_f32 v{t[i]}, 1.0, v{t[i]}")
            for i in range(4): a(f"v_rcp_f32 v{t[i]}, v{t[i]}")
            for i in range(4): a(f"v_mul_f32 v{t[i]}, v{t[i]}, v{r[i]}")
            a(f"v_cvt_pk_bf16_f32 v{out+h//2}, v{t[0]}, v{t[1]}")
            a(f"v_cvt_pk_bf16_f32 v{out+h//2+1}, v{t[2]}, v{t[3]}")
    def plain_pack(self, acc, out):
        for i in range(8): self.a(f"v_cvt_pk_bf16_f32 v{out+i}, v{acc+2*i}, v{acc+2*i+1}")
    def swap(self, out):
        self.a("s_nop 1")
        for i in range(4): self.a(f"v_permlane16_swap_b32 v{out+i}, v{out+4+i}")
    def set_flag(self, stage):
        a = self.a
        a(f"""s_waitcnt vmcnt(0)
    s_mov_b64 exec, 1
    buffer_store_dword v3, v2, {srd(SWS)}, 0 offen offset:{stage*128} sc1
    s_mov_b64 exec, -1""")
    def poll(self, mask, voff, tag):
        a = self.a; L = a.label("L_poll"); D = a.label("L_got")
        a(f"""s_mov_b32 exec_lo, {mask}
    s_mov_b32 exec_hi, 0
    s_mov_b32 s{sCNT}, 0
{L}:
    buffer_load_dword v4, v{voff}, {srd(SWS)}, 0 offen offset:{tag} sc1
    s_add_u32 s{sCNT}, s{sCNT}, 1
    s_cmp_gt_u32 s{sCNT}, 100000
    s_cbranch_scc1 {D}
    s_waitcnt vmcnt(0)
    v_cmp_eq_u32 vcc, 0, v4
    s_cbranch_vccnz {L}
{D}:
    s_waitcnt vmcnt(0)
    s_mov_b64 exec, -1""")

    def act_addrs(self, dst, rowbase_s, shift, add):
        a = self.a
        a(f"v_and_b32 v26, 31, v0")
        if shift: a(f"v_add_u32 v26, {shift}, v26")
        a(f"""v_bfe_u32 v27, v26, 1, 3
    v_lshrrev_b32 v28, 5, v0
    v_xor_b32 v27, v27, v28
    v_lshlrev_b32 v27, 4, v27
    v_lshl_add_u32 v27, v26, 7, v27
    v_add_u32 v27, s{rowbase_s}, v27""")
        if add: a(f"v_add_u32 v27, {add}, v27")
        for s in range(4):
            a(f"v_xor_b32 v{dst+s}, {32*s}, v27")
    def compute_setup(self):
        a = self.a
        a(f"""
    s_lshl_b32 s{sT0}, s{sJ}, 2
    s_add_u32 s{sT0}, s{sT0}, s{sW}
    s_lshl_b32 s{sT0}, s{sT0}, 2
    s_add_u32 s{sT0}, s{sT0}, {WS_FL}
    v_mov_b32 v2, s{sT0}
    v_mov_b32 v3, 1
    s_cmp_lg_u32 s{sW}, 0
    s_cbranch_scc1 L_noclear
    v_lshrrev_b32 v4, 2, v0
    v_lshlrev_b32 v4, 7, v4
    v_and_b32 v5, 3, v0
    v_lshl_add_u32 v4, v5, 2, v4
    v_add_u32 v4, s{sT0}, v4
    v_mov_b32 v5, 0
    s_mov_b64 exec, 0xffff
    buffer_store_dword v5, v4, {srd(SWS)}, 0 offen sc1
    s_getreg_b32 s{sT1}, hwreg(HW_REG_XCC_ID, 0, 4)
    s_or_b32 s{sT1}, s{sT1}, 0x80
    v_mov_b32 v5, s{sT1}
    s_lshl_b32 s{sT1}, s{sC}, 3
    s_add_u32 s{sT1}, s{sT1}, s{sJ}
    v_mov_b32 v4, s{sT1}
    s_mov_b64 exec, 1
    s_waitcnt vmcnt(0)
    buffer_store_byte v5, v4, {srd(SDBG)}, 0 offen sc1
    s_mov_b64 exec, -1
L_noclear:
    """)
        a(f"""
    s_and_b32 s{sT0}, s{sW}, 1               ; wn
    s_lshr_b32 s{sT1}, s{sW}, 1              ; wm
    v_bfe_u32 v26, v0, 2, 2                  ; r4
    v_lshrrev_b32 v27, 5, v0
    v_lshl_add_u32 v27, v27, 3, v26          ; row = 8h + r4
    v_lshlrev_b32 v27, 7, v27
    v_and_b32 v28, 1, v0
    v_lshlrev_b32 v28, 1, v28
    v_bfe_u32 v29, v0, 4, 1
    v_add_u32 v28, v28, v29                  ; c16' = 2*(c4&1) + cg
    s_lshl_b32 s{sT2}, s{sT0}, 2
    v_add_u32 v28, s{sT2}, v28               ; + 4*wn
    v_bfe_u32 v29, v0, 3, 1                  ; (r4>>1)&1
    v_lshlrev_b32 v29, 2, v29
    v_xor_b32 v28, v28, v29
    v_lshl_add_u32 v27, v28, 4, v27
    v_bfe_u32 v29, v0, 1, 1
    v_lshl_add_u32 v24, v29, 3, v27
    v_add_u32 v25, 57344, v24
    """)
        a(f"""
    v_and_b32 v26, 15, v0
    v_lshlrev_b32 v26, 10, v26
    v_lshrrev_b32 v27, 4, v0
    v_lshl_add_u32 v26, v27, 4, v26
    s_lshl_b32 s{sT2}, s{sJ}, 7
    s_lshl_b32 s{sT3}, s{sT0}, 6
    s_add_u32 s{sT2}, s{sT2}, s{sT3}
    v_add_u32 v5, s{sT2}, v26
    s_or_b32 s{sT2}, s{sQ}, s{sT1}
    s_cmp_eq_u32 s{sT2}, 0
    s_cselect_b32 s{sZM}, 0x00010001, 0
    s_mov_b32 s{sZM+1}, s{sZM}
    s_lshl_b32 s{sT2}, s{sT1}, 13
    """)
        self.act_addrs(8, sT2, 0, 0)
        self.act_addrs(12, sT2, 1, 0)
        for i in range(8): a(f"v_add_u32 v{16+i}, 57344, v{8+i}")

    def mfma(self, acc, wa, xb, first):
        c = "0" if first else f"v[{acc}:{acc+15}]"
        return f"v_mfma_f32_32x32x16_bf16 v[{acc}:{acc+15}], v[{wa}:{wa+3}], v[{xb}:{xb+3}], {c}"

    def conv1(self):
        steps = []; bar_at = set()
        for ch in range(8):
            par = ch % 2
            for (unit, taps) in (("A", (0, 2)), ("B", (1,))):
                bar_at.add(len(steps))
                for tap in taps:
                    for s in range(4):
                        if unit == "A":
                            xoff = 0; woff = 16384 + (tap//2)*8192; areg = (8 if tap == 0 else 12) + s
                        else:
                            xoff = 32768; woff = 32768 + 16384; areg = 8 + s
                        areg += 8*par; breg = 24 + par
                        first = (len(steps) == 0)
                        def reads(b, areg=areg, breg=breg, xoff=xoff, woff=woff, s=s):
                            return [f"ds_read_b64_tr_b16 v[{b}:{b+1}], v{breg} offset:{woff + s*2048}",
                                    f"ds_read_b64_tr_b16 v[{b+2}:{b+3}], v{breg} offset:{woff + s*2048 + 512}",
                                    f"ds_read_b128 v[{b+4}:{b+7}], v{areg} offset:{xoff}",
                                    f"ds_read_b128 v[{b+8}:{b+11}], v{areg} offset:{xoff + 4096}"]
                        def mf(b, first=first):
                            return [self.mfma(32, b, b+4, first), self.mfma(48, b, b+8, first)]
                        steps.append((reads, mf))
        self.stream(steps, 3, bar_at, 64, 12, True)
        a = self.a
        self.stamp("c", "c1mfma")
        a(f"v_mov_b32 v116, s{sGC0}\ns_nop 7\ns_nop 3")
        for mt in range(2):
            self.gelu_pack(32+16*mt, 112, 120)
            self.swap(120)
            if mt == 0:
                a("s_nop 1")
                for i in range(4): a(f"v_cndmask_b32 v{120+i}, v{120+i}, 0, s[{sZM}:{sZM+1}]")
            a(f"s_lshr_b32 s{sT1}, s{sW}, 1\ns_lshl_b32 s{sT1}, s{sT1}, 16\ns_add_u32 s{sT1}, s{sT1}, {WS_H + mt*32768}")
            a(f"buffer_store_dwordx4 v[120:123], v5, {srd(SWS)}, s{sT1} offen sc1")
            a(f"s_add_u32 s{sT1}, s{sT1}, 16384")
            a(f"buffer_store_dwordx4 v[124:127], v5, {srd(SWS)}, s{sT1} offen sc1")
            a("s_nop 1")
        self.stamp("c", "c1epi")
        self.set_flag(0)
        self.stamp("c", "c1flag")

    def gemm32(self, chunks, R=4):
        steps = []; bar_at = set()
        for bar, ks in chunks:
            if bar: bar_at.add(len(steps))
            for (areg, aoff, breg, boff) in ks:
                first = (len(steps) == 0)
                def reads(b, areg=areg, aoff=aoff, breg=breg, boff=boff):
                    return [f"ds_read_b64_tr_b16 v[{b}:{b+1}], v{breg} offset:{boff}",
                            f"ds_read_b64_tr_b16 v[{b+2}:{b+3}], v{breg} offset:{boff + 512}",
                            f"ds_read_b128 v[{b+4}:{b+7}], v{areg} offset:{aoff}"]
                def mf(b, first=first): return [self.mfma(32, b, b+4, first)]
                steps.append((reads, mf))
        self.stream(steps, R, bar_at, 64, 8, False)

    def lds2(self, reg_lo, reg_hi, addr):
        HI = 98304
        if addr < 65536 - 4096: return reg_lo, addr
        raise ValueError

    def conv2(self):
        a = self.a
        a(f"s_lshr_b32 s{sT1}, s{sW}, 1\ns_lshl_b32 s{sT2}, s{sT1}, 12")
        self.act_addrs(8, sT2, 0, 49152)
        self.act_addrs(12, sT2, 1, 49152)
        a("v_add_u32 v25, 114688, v24")
        chunks = []
        for v in range(8):
            h = C2_H[v % 4] - 49152; w = C2_W[v % 4]
            breg, wb = (25, w - 114688) if w >= 114688 else (24, w)
            ks = []
            for tap in (0, 2, 1):
                for s in range(4):
                    areg = (12 if tap == 2 else 8) + s
                    ks.append((areg, h + (8192 if tap == 1 else 0), breg, wb + tap*8192 + s*2048))
            chunks.append((True, ks))
        self.gemm32(chunks)
        self.stamp("c", "c2mfma")
        a("s_barrier")
        a(f"v_mov_b32 v116, s{sGC0}\ns_nop 7\ns_nop 3")
        self.gelu_pack(32, 112, 120)
        self.swap(120)
        a(f"s_lshr_b32 s{sT1}, s{sW}, 1\ns_lshl_b32 s{sT1}, s{sT1}, 15\ns_add_u32 s{sT1}, s{sT1}, {WS_F}")
        a(f"buffer_store_dwordx4 v[120:123], v5, {srd(SWS)}, s{sT1} offen sc1")
        a(f"s_add_u32 s{sT1}, s{sT1}, 16384")
        a(f"buffer_store_dwordx4 v[124:127], v5, {srd(SWS)}, s{sT1} offen sc1")
        self.set_flag(1)
        self.stamp("c", "c2flag")

    WG_AT = [114688, 122880, 131072, 49152, 57344, 139264, 147456, 155648]
    G_AT = 65536
    WF_AT = [73728, 0, 8192, 16384, 81920, 90112, 98304, 106496]
    F_AT = [24576, 32768, 40960, 114688, 122880, 131072, 49152, 57344]
    def base3(self, lo, mid, hi, addr):
        if addr >= 114688: return hi, addr - 114688
        if addr >= 57344: return mid, addr - 57344
        return lo, addr
    def ge_fe(self):
        a = self.a
        a("v_add_u32 v6, 57344, v24")
        a("s_barrier")
        a(f"s_cmp_ge_u32 s{sW}, 2\ns_cbranch_scc1 L_noge")
        a(f"s_mov_b32 s{sT2}, 0")
        self.act_addrs(8, sT2, 0, self.G_AT)
        chunks = []
        for c in range(8):
            breg, wb = self.base3(24, 6, 25, self.WG_AT[c])
            chunks.append((False, [(8+s, c*1024, breg, wb + s*2048) for s in range(4)]))
        self.gemm32(chunks)
        a("s_nop 7\ns_nop 7")
        self.plain_pack(32, 120)
        self.swap(120)
        a(f"s_mov_b32 s{sT1}, {WS_GE}")
        a(f"buffer_store_dwordx4 v[120:123], v5, {srd(SWS)}, s{sT1} offen sc1")
        self.set_flag(3)
        a("L_noge:")
        self.stamp("c", "ge")
        a("s_barrier")
        a(f"s_lshr_b32 s{sT1}, s{sW}, 1\ns_lshl_b32 s{sT2}, s{sT1}, 12")
        self.act_addrs(8, sT2, 0, 0)
        for s in range(4):
            a(f"v_add_u32 v{12+s}, 57344, v{8+s}\nv_add_u32 v{16+s}, 114688, v{8+s}")
        chunks = []
        for c in range(8):
            breg, wb = self.base3(24, 6, 25, self.WF_AT[c])
            areg, ab = self.base3(8, 12, 16, self.F_AT[c])
            chunks.append((c % 2 == 0, [(areg+s, ab, breg, wb + s*2048) for s in range(4)]))
        self.gemm32(chunks)
        self.stamp("c", "femfma")
        a("s_barrier")
        a("s_nop 7\ns_nop 3")
        self.plain_pack(32, 120)
        self.swap(120)
        a(f"s_lshr_b32 s{sT1}, s{sW}, 1\ns_lshl_b32 s{sT1}, s{sT1}, 15\ns_add_u32 s{sT1}, s{sT1}, {WS_FE}")
        a(f"buffer_store_dwordx4 v[120:123], v5, {srd(SWS)}, s{sT1} offen sc1")
        a(f"s_add_u32 s{sT1}, s{sT1}, 16384")
        a(f"buffer_store_dwordx4 v[124:127], v5, {srd(SWS)}, s{sT1} offen sc1")
        self.set_flag(2)
        self.stamp("c", "feflag")

    def dma(self, vreg, s, soff, imm, flags=""):
        self.a(f"buffer_load_dwordx4 v{vreg}, {srd(s)}, {soff} offen" + (f" offset:{imm}" if imm else "") + f" {flags} lds")
        self.q.append(self.cur)
    def m0(self, const, wavemul):
        r = {1024: 96, 2048: 97, 4096: 98}[wavemul]
        self.a(f"s_add_u32 m0, s{r}, {const}")
    def wait_unit(self, *names):
        last = max(i for i, n in enumerate(self.q) if n in names)
        n = len(self.q) - 1 - last
        assert n < 64, n
        self.a(f"s_waitcnt vmcnt({n})")
    def loader_setup(self):
        a = self.a
        a(f"""
L_loader:
    s_and_b32 s{sLW}, s{sW}, 3
    s_lshl_b32 s96, s{sLW}, 10
    s_lshl_b32 s97, s{sLW}, 11
    s_lshl_b32 s98, s{sLW}, 12
    v_lshrrev_b32 v1, 3, v0
    v_and_b32 v2, 7, v0                      ; position
    v_lshrrev_b32 v3, 4, v0
    v_xor_b32 v4, v2, v3
    v_xor_b32 v5, 4, v4
    v_lshlrev_b32 v4, 4, v4
    v_lshlrev_b32 v5, 4, v5
    s_mul_i32 s{sT0}, s{sQ}, 252
    s_lshl_b32 s{sT1}, s{sLW}, 6
    s_add_u32 s{sT0}, s{sT0}, s{sT1}         ; 252q + 64 lw
    v_lshlrev_b32 v6, 1, v1
    v_add_u32 v6, s{sT0}, v6                 ; 252q + 64 lw + 2r
    """)
        for i in range(4):
            for (dst, d) in ((8+i, -3), (12+i, -2)):
                sw = 4 if i % 2 == 0 else 5
                a(f"""v_add_u32 v28, {16*i + d}, v6
    v_cmp_gt_i32 vcc, 0, v28
    v_lshl_add_u32 v28, v28, 10, v{sw}
    v_subrev_u32 v28, {1024*i}, v28
    v_mov_b32 v29, 0x80000000
    v_cndmask_b32 v{dst}, v28, v29, vcc""")
        a(f"""v_bfe_u32 v28, v0, 4, 1
    v_lshlrev_b32 v28, 2, v28
    v_xor_b32 v28, v28, v2
    v_lshlrev_b32 v28, 4, v28
    v_lshl_add_u32 v28, v1, 10, v28
    s_lshl_b32 s{sT0}, s{sJ}, 7
    v_add_u32 v16, s{sT0}, v28""")
        for i in range(1, 4): a(f"v_add_u32 v{16+i}, {i*7168}, v16")
        a(f"""s_lshr_b32 s{sT0}, s{sLW}, 1
    s_lshl_b32 s{sT0}, s{sT0}, 20
    s_and_b32 s{sT1}, s{sLW}, 1
    s_lshl_b32 s{sT1}, s{sT1}, 15
    s_add_u32 s{sA1}, s{sT0}, s{sT1}
    s_lshl_b32 s{sB1}, s{sLW}, 14""")
        a(f"""s_and_b32 s{sT0}, s{sLW}, 1
    s_lshl_b32 s{sT0}, s{sT0}, 16
    s_lshr_b32 s{sT1}, s{sLW}, 1
    s_lshl_b32 s{sT1}, s{sT1}, 10
    s_add_u32 s{sT0}, s{sT0}, s{sT1}
    v_lshlrev_b32 v28, 11, v1
    v_add_u32 v28, s{sT0}, v28""")
        for i in range(4):
            a(f"v_add_u32 v{20+i}, v28, v{4 if i % 2 == 0 else 5}")
            if i: a(f"v_add_u32 v{20+i}, {i*(16384-1024)}, v{20+i}")
        a(f"""v_lshlrev_b32 v28, 10, v1
    v_add_u32 v26, v28, v4
    v_add_u32 v24, s{sB1}, v26
    v_add_u32 v25, v28, v5
    v_add_u32 v25, s{sB1}, v25
    v_add_u32 v25, {8192-1024}, v25""")
        a(f"""v_lshrrev_b32 v28, 5, v0
    s_lshl_b32 s{sT0}, s{sLW}, 1
    v_add_u32 v28, s{sT0}, v28
    v_and_b32 v29, 3, v28
    v_lshlrev_b32 v29, 2, v29
    v_and_b32 v30, 31, v0
    v_xor_b32 v29, v29, v30
    v_lshlrev_b32 v29, 4, v29
    v_lshl_add_u32 v27, v28, 10, v29
    s_and_b32 s{sT0}, s{sJ}, 1
    s_lshl_b32 s{sT0}, s{sT0}, 9
    v_add_u32 v27, s{sT0}, v27
    v_lshlrev_b32 v7, 2, v0
    v_add_u32 v7, {WS_FL}, v7""")
        self.q = []
    def chunk_s(self, v):
        self.a(f"s_add_u32 s{sT2}, s{sROT}, {v}\ns_and_b32 s{sT2}, s{sT2}, 7")
    def c1_unit(self, u):
        a = self.a; ch, isB = divmod(u, 2); self.cur = ("c1", u)
        base = (C1_B if isB else C1_A)[ch % 2]
        self.chunk_s(ch)
        self.m0(base, 4096)
        a(f"s_lshl_b32 s{sT0}, s{sT2}, 7")
        for i in range(4): self.dma((12 if isB else 8)+i, SX, f"s{sT0}", 1024*i, "nt" if self.xnt else "")
        a(f"s_lshl_b32 s{sT0}, s{sT2}, 16")
        if isB:
            self.m0(base + 16384, 2048)
            a(f"s_add_u32 s{sT0}, s{sT0}, s{sB1}\ns_add_u32 s{sT0}, s{sT0}, 524288")
            for i in range(2): self.dma(16+i, SW1, f"s{sT0}", 1024*i)
        else:
            self.m0(base + 16384, 4096)
            a(f"s_add_u32 s{sT0}, s{sT0}, s{sA1}")
            for i in range(4): self.dma(16+i, SW1, f"s{sT0}", 1024*i)
    def w2_unit(self, v):
        a = self.a; self.cur = ("w2", v)
        self.chunk_s(v)
        a(f"s_lshl_b32 s{sT0}, s{sT2}, 16\ns_add_u32 s{sT0}, s{sT0}, s{sB1}")
        for tap in range(3):
            self.m0(C2_W[v % 4] + tap*8192, 2048)
            if tap: a(f"s_add_u32 s{sT0}, s{sT0}, 524288")
            else: a("s_nop 0")
            for i in range(2): self.dma(16+i, SW2, f"s{sT0}", 1024*i)
    def h_unit(self, v):
        a = self.a; self.cur = ("h", v)
        self.chunk_s(v)
        self.m0(C2_H[v % 4], 4096)
        a(f"s_lshl_b32 s{sT0}, s{sT2}, 7")
        for i in range(4): self.dma(20+i, SWS, f"s{sT0}", 1024*i, "sc1")
    def wsm_unit(self, name, s, c, at):
        a = self.a; self.cur = (name, c)
        self.chunk_s(c)
        self.m0(at, 2048)
        a(f"s_lshl_b32 s{sT0}, s{sT2}, 16\ns_add_u32 s{sT0}, s{sT0}, s{sB1}")
        for i in range(2): self.dma(16+i, s, f"s{sT0}", 1024*i)
    def g_unit(self):
        a = self.a; self.cur = ("g", 0)
        for i in range(2):
            a(f"s_lshl_b32 s{sT2}, s{sLW}, 1\ns_add_u32 s{sT2}, s{sT2}, s{sROT}\ns_add_u32 s{sT2}, s{sT2}, {i}\ns_and_b32 s{sT2}, s{sT2}, 7")
            self.m0(self.G_AT + 1024*i, 2048)
            a(f"s_lshl_b32 s{sT0}, s{sT2}, 7")
            self.dma(26, SG, f"s{sT0}", 0)
    def f_unit(self, c):
        a = self.a; self.cur = ("f", c)
        self.chunk_s(c)
        self.m0(self.F_AT[c], 2048)
        a(f"s_lshl_b32 s{sT0}, s{sT2}, 7\ns_add_u32 s{sT0}, s{sT0}, {WS_F}")
        for i in range(2): self.dma(24+i, SWS, f"s{sT0}", 1024*i, "sc1")
    def wo_unit(self, r):
        a = self.a; self.cur = ("wo", r)
        a(f"s_mov_b32 s{sT0}, {r*262144}")
        for i in range(32):
            self.m0(i*4096, 1024)
            if i: a(f"s_add_u32 s{sT0}, s{sT0}, 8192")
            else: a("s_nop 0")
            self.dma(27, SWO, f"s{sT0}", 0)

    def loader(self):
        a = self.a
        self.loader_setup()
        for u in range(4): self.c1_unit(u)
        self.stamp("l", "issue0")
        for u in range(16):
            self.wait_unit(("c1", u)); a("s_barrier")
            if u in (0, 7, 15): self.stamp("l", f"c1u{u}")
            if u >= 1 and u+3 < 16: self.c1_unit(u+3)
            if u == 12: self.w2_unit(0)
            if u == 13: self.w2_unit(1); self.w2_unit(2)
            if u == 14: self.w2_unit(3)
        L = a.label("L_pub"); D = a.label("L_pubd")
        a(f"""s_lshl_b32 s{sT0}, s{sC}, 3
    v_mov_b32 v1, s{sT0}
    s_mov_b32 s{sCNT}, 0
{L}:
    buffer_load_dwordx2 v[2:3], v1, {srd(SDBG)}, 0 offen sc1
    s_add_u32 s{sCNT}, s{sCNT}, 1
    s_cmp_gt_u32 s{sCNT}, 100000
    s_cbranch_scc1 {D}
    s_waitcnt vmcnt(0)
    v_and_b32 v2, v2, v3
    v_and_b32 v2, 0x80808080, v2
    v_cmp_ne_u32 vcc, 0x80808080, v2
    s_cbranch_vccnz {L}
{D}:""")
        self.poll("0xffffffff", 7, 0)
        self.q = []
        self.stamp("l", "sync1")
        for v in range(4): self.h_unit(v)
        for v in range(8):
            self.wait_unit(("h", v), ("w2", v)) if v >= 4 else self.wait_unit(("h", v))
            a("s_barrier")
            if v in (0, 7): self.stamp("l", f"c2v{v}")
            if 2 <= v < 6: self.h_unit(v+2); self.w2_unit(v+2)
            if v == 6:
                for c in range(5): self.wsm_unit("wg", SWG, c, self.WG_AT[c])
            if v == 7:
                for c in range(5, 8): self.wsm_unit("wg", SWG, c, self.WG_AT[c])
                self.g_unit()
                self.wsm_unit("wf", SWF, 0, self.WF_AT[0])
        a("s_barrier")
        for c in range(1, 8): self.wsm_unit("wf", SWF, c, self.WF_AT[c])
        self.wait_unit(("g", 0)); a("s_barrier")
        self.poll("0xffffffff", 7, 128)
        self.q = []
        self.stamp("l", "sync2")
        for c in range(3): self.f_unit(c)
        a("s_barrier")
        for c in range(3, 8): self.f_unit(c)
        for c in range(0, 8, 2):
            self.wait_unit(("f", c+1)); a("s_barrier")
        self.stamp("l", "f7")
        a("s_barrier")

    JA = [0, 33280]
    def tanh_ops(self, ps, slow):
        o = []
        f0, f1 = 8 + 2*ps, 9 + 2*ps
        o += [f"v_lshlrev_b32 v112, 16, v{f0}", f"v_and_b32 v113, 0xffff0000, v{f0}",
              f"v_lshlrev_b32 v114, 16, v{f1}", f"v_and_b32 v115, 0xffff0000, v{f1}"]
        o += [f"v_mul_f32 v{112+i}, s{sTC}, v{112+i}" for i in range(4)]
        if not slow:
            o += [f"v_exp_f32 v{112+i}, v{112+i}" for i in range(4)]
            o += ["s_nop 0"]
        for u in range(8):
            t = [116, 117, 118, 119]
            if slow:
                o += [f"v_add_f32 v{t[i]}, v{112+i}, v{80+4*u+i}" for i in range(4)]
                o += [f"v_exp_f32 v{t[i]}, v{t[i]}" for i in range(4)]
                o += [f"v_add_f32 v{t[i]}, 1.0, v{t[i]}" for i in range(4)]
            else:
                o += [f"v_fma_f32 v{t[i]}, v{112+i}, v{80+4*u+i}, 1.0" for i in range(4)]
            o += [f"v_rcp_f32 v{t[i]}, v{t[i]}" for i in range(4)]
            o += [f"v_fma_f32 v{t[i]}, v{t[i]}, -2.0, 1.0" for i in range(4)]
            d = 16 + 2*(u % 2)
            o += [f"v_cvt_pk_bf16_f32 v{d}, v116, v117", f"v_cvt_pk_bf16_f32 v{d+1}, v118, v119"]
            o += [f"ds_write_b64 v2, v[{d}:{d+1}] offset:{self.JA[ps % 2] + u*1040}"]
        return o
    def out_ops(self, ps):
        acc = 32 + 16*(ps % 2)
        o = [f"v_cvt_pk_bf16_f32 v{120+i}, v{acc+2*i}, v{acc+2*i+1}" for i in range(8)]
        o += ["s_nop 1"] + [f"v_permlane16_swap_b32 v{120+i}, v{124+i}" for i in range(4)]
        o += [f"s_mov_b32 s{sT0}, {ps*32768}", f"buffer_store_dwordx4 v[120:123], v5, {srd(SOUT)}, s{sT0} offen sc1",
              f"s_mov_b32 s{sT0}, {ps*32768+16384}", f"buffer_store_dwordx4 v[124:127], v5, {srd(SOUT)}, s{sT0} offen sc1"]
        return o
    def jpass(self, ps, fill):
        a = self.a; acc = 32 + 16*(ps % 2); R = 3; NS = 4
        rd = lambda s: f"ds_read_b128 v[{64+4*(s % NS)}:{67+4*(s % NS)}], v1 offset:{self.JA[ps % 2] + 32*s}"
        q = []
        for s in range(R): a(rd(s)); q.append(("r", s))
        k = 0
        for s in range(32):
            last = q.index(("r", s)); n = len(q) - 1 - last
            a(f"s_waitcnt lgkmcnt({n})")
            c = "0" if s == 0 else f"v[{acc}:{acc+15}]"
            a(f"v_mfma_f32_32x32x16_bf16 v[{acc}:{acc+15}], a[{4*s}:{4*s+3}], v[{64+4*(s % NS)}:{67+4*(s % NS)}], {c}")
            if s + R < 32: a(rd(s+R)); q.append(("r", s+R))
            k2 = len(fill)*(s+1)//30 if s < 29 else len(fill)
            for ins in fill[k:k2]:
                a(ins)
                if ins.startswith("ds_write"): q.append(("w", 0))
            k = max(k, k2)
        a("s_waitcnt lgkmcnt(0)")
    def joint(self):
        a = self.a
        a("L_joint:")
        a(f"""
    v_and_b32 v1, 31, v0
    v_mul_u32_u24 v1, 1040, v1
    v_lshrrev_b32 v2, 5, v0
    v_lshl_add_u32 v1, v2, 4, v1             ; A read
    v_lshrrev_b32 v8, 4, v0                  ; tt
    v_and_b32 v9, 15, v0                     ; kq
    s_lshl_b32 s{sT0}, s{sW}, 7
    v_lshl_add_u32 v10, v9, 3, s{sT0}
    v_mul_u32_u24 v2, 8320, v8
    v_add_u32 v2, v2, v10                    ; A write
    s_lshr_b32 s{sT1}, s{sJ}, 1
    s_lshl_b32 s{sT1}, s{sT1}, 14
    v_lshl_add_u32 v3, v8, 10, v10
    v_add_u32 v3, s{sT1}, v3
    v_lshlrev_b32 v5, 10, v9
    v_lshl_add_u32 v5, v8, 4, v5
    s_lshl_b32 s{sT1}, s{sT1}, 3
    s_and_b32 s{sT2}, s{sJ}, 1
    s_lshl_b32 s{sT2}, s{sT2}, 9
    s_add_u32 s{sT1}, s{sT1}, s{sT2}
    s_lshl_b32 s{sT2}, s{sW}, 6
    s_add_u32 s{sT1}, s{sT1}, s{sT2}
    v_add_u32 v5, s{sT1}, v5
    v_bfe_u32 v11, v0, 2, 2                  ; r4
    v_lshrrev_b32 v12, 5, v0
    v_lshl_add_u32 v12, v12, 3, v11
    v_lshlrev_b32 v12, 9, v12                ; row * 512
    v_xor_b32 v13, s{sW}, v11
    v_lshl_add_u32 v12, v13, 6, v12
    v_and_b32 v13, 1, v0
    v_lshl_add_u32 v12, v13, 5, v12
    v_bfe_u32 v13, v0, 4, 1
    v_lshl_add_u32 v12, v13, 4, v12
    v_bfe_u32 v13, v0, 1, 1
    v_lshl_add_u32 v6, v13, 3, v12
    v_add_u32 v14, 65536, v6
    v_lshlrev_b32 v7, 2, v0
    v_add_u32 v7, {WS_FL}, v7
    """)
        for r in range(2):
            a(f"s_cmp_lt_u32 s{sW}, 4\ns_cbranch_scc1 L_wo{r}")
            self.q = []
            self.wo_unit(r)
            a(f"s_waitcnt vmcnt(0)\nL_wo{r}:\ns_barrier")
            for s in range(16):
                for e in range(2):
                    reg, off = (6, s*8192 + e*2048) if s < 8 else (14, (s-8)*8192 + e*2048)
                    a(f"ds_read_b64_tr_b16 a[{64*r+4*s+2*e}:{64*r+4*s+2*e+1}], v{reg} offset:{off}")
                if s % 4 == 3: a("s_waitcnt lgkmcnt(0)")
            a("s_barrier")
        self.stamp("c", "wo"); self.names["l"].append("wo");
        self.poll("0x33333333", 7, 3*128)
        for u in range(8):
            a(f"s_mov_b32 s{sT0}, {WS_GE + u*1024}\nbuffer_load_dwordx2 v[{16+2*u}:{17+2*u}], v10, {srd(SWS)}, s{sT0} offen sc1")
        self.poll("0xffffffff", 7, 2*128)
        for ps in range(4):
            a(f"s_mov_b32 s{sT0}, {WS_FE + ps*4096}\nbuffer_load_dwordx2 v[{8+2*ps}:{9+2*ps}], v3, {srd(SWS)}, s{sT0} offen sc1")
        for u in range(8):
            a(f"""v_lshlrev_b32 v{80+4*u}, 16, v{16+2*u}
    v_and_b32 v{81+4*u}, 0xffff0000, v{16+2*u}
    v_lshlrev_b32 v{82+4*u}, 16, v{17+2*u}
    v_and_b32 v{83+4*u}, 0xffff0000, v{17+2*u}""")
        a("v_mov_b32 v116, 0")
        for i in range(0, 32, 2): a(f"v_max3_f32 v116, abs(v{80+i}), abs(v{81+i}), v116")
        for i in range(32): a(f"v_mul_f32 v{80+i}, s{sTC}, v{80+i}")
        a("s_waitcnt vmcnt(0)")
        for i in range(8):
            a(f"v_lshlrev_b32 v117, 16, v{8+i}\nv_and_b32 v118, 0xffff0000, v{8+i}\nv_max3_f32 v116, abs(v117), abs(v118), v116")
        a(f"""v_cmp_lt_f32 vcc, 0x42200000, v116       ; 40.0 < max|.|
    s_cbranch_vccnz L_jslow""")
        for i in range(32): a(f"v_exp_f32 v{80+i}, v{80+i}")
        a("s_nop 0")
        self.stamp("c", "jpre"); self.names["l"].append("jpre")
        for slow in (False, True):
            if slow: a("L_jslow:")
            for ins in self.tanh_ops(0, slow): a(ins)
            a("s_waitcnt lgkmcnt(0)\ns_barrier")
            for ps in range(4):
                fill = []
                if ps > 0: fill += ["s_nop 7"] + self.out_ops(ps-1)
                if ps < 3: fill += self.tanh_ops(ps+1, slow)
                self.jpass(ps, fill)
                if ps < 3: a("s_barrier")
            a("s_nop 7\ns_nop 3")
            for ins in self.out_ops(3): a(ins)
            if not slow: a("s_branch L_fin")
        a("L_fin:")
        self.stamp("c", "jend"); self.names["l"].append("jend")

    def finish(self):
        a = self.a
        if self.stamps:
            a("s_waitcnt vmcnt(0)")
            self.stamp("c", "drain"); self.names["l"].append("drain")
            a("s_waitcnt lgkmcnt(0)")
            for i in range(16): a(f"v_mov_b32 v{16+i}, s{STAMP0+2*i}")
            a(f"""s_lshl_b32 s{sT0}, s{sJ}, 3
    s_add_u32 s{sT0}, s{sT0}, s{sW}
    s_lshl_b32 s{sT0}, s{sT0}, 6
    s_add_u32 s{sT0}, s{sT0}, {WS_STAMP}
    v_mov_b32 v1, s{sT0}
    s_mov_b64 exec, 1""")
            for i in range(4): a(f"buffer_store_dwordx4 v[{16+4*i}:{19+4*i}], v1, {srd(SWS)}, 0 offen offset:{16*i}")
        a("L_end:\ns_endpgm")

    def build(self):
        a = self.a
        a(header([(None, 256, 512, 163840)]))
        a(kernel_begin(KN))
        self.prologue()
        self.compute_setup()
        self.conv1(); self.conv2(); self.ge_fe()
        a("s_branch L_joint")
        nc = self.nst["c"]
        self.loader()
        n = max(self.nst["c"], self.nst["l"])
        while len(self.names["c"]) < n: self.names["c"].append("-")
        while len(self.names["l"]) < n: self.names["l"].append("-")
        self.nst["c"] = n
        self.joint()
        self.finish()
        a(descriptor(KN, 256, 128))
        return a.text()

if __name__ == "__main__":
    out = sys.argv[1] if len(sys.argv) > 1 else "k1.s"
    g = Gen(stamps=("stamps" in sys.argv))
    open(out, "w").write(g.build())
    print(g.names)
```

```python
import re
TRANS_D = 1
CVT = 5
PLAIN_D = 0
def port_cost(ins):
    op = ins.split()[0]
    if op.startswith(("v_exp", "v_rcp")): return 8
    if op.startswith("v_cvt_pk"): return CVT
    if op.startswith("v_"): return 4
    return 0
def regs(tok):
    m = re.fullmatch(r"-?(?:abs\()?([vas])\[(\d+):(\d+)\]\)?", tok)
    if m: return {f"{m.group(1)}{i}" for i in range(int(m.group(2)), int(m.group(3))+1)}
    m = re.fullmatch(r"-?(?:abs\()?([vas])(\d+)\)?", tok)
    if m: return {m.group(1)+m.group(2)}
    return set()
def rw(ins):
    op, rest = (ins.split(None, 1) + [""])[:2]
    toks = [t.strip() for t in rest.split(",")]
    toks = [t.split()[0] if t else t for t in toks]
    if op.startswith(("ds_write", "buffer_store")):
        return set().union(*[regs(t) for t in toks]), set()
    if op.startswith("v_permlane"):
        r = regs(toks[0]) | regs(toks[1]); return r, r
    return set().union(set(), *[regs(t) for t in toks[1:]]), regs(toks[0])
def need_gap(prod, cons):
    po, co = prod.split()[0], cons.split()[0]
    if co.startswith("v_permlane") and po.startswith("v_"): return 2
    if po.startswith(("v_exp", "v_rcp")): return max(1, TRANS_D)
    if po.startswith("v_") and PLAIN_D: return PLAIN_D
    if po.startswith("buffer_store") and co.startswith("v_"): return 2
    return 0
def schedule(chains, ngaps, budget, maxins=8, start=None, window=None):
    n = len(chains); R = [rw(i) for i in chains]
    deps = [[] for _ in range(n)]
    for j in range(n):
        for i in range(j):
            raw = R[i][1] & R[j][0]; waw = R[i][1] & R[j][1]; war = R[i][0] & R[j][1]
            mem = chains[i].startswith(("ds_write", "buffer_store")) and chains[j].startswith(("ds_write", "buffer_store"))
            if raw or waw or war or mem:
                deps[j].append((i, need_gap(chains[i], chains[j]) if (raw or (war and chains[i].startswith('buffer_store'))) else 0))
    pos = [None]*n; out = []; slot = 0; done = 0
    total = sum(port_cost(c) for c in chains); spent = 0
    for g in range(ngaps):
        cur = []; left = budget if g < ngaps-1 else 10**9
        slot += 2
        while done < n and (len(cur) < maxins or g == ngaps-1):
            pick = None
            for j in range(n):
                if pos[j] is not None: continue
                if start and start.get(j, 0) > g: continue
                if port_cost(chains[j]) > left: continue
                if all(pos[i] is not None and slot - pos[i] - 1 >= d for i, d in deps[j]):
                    pick = j; break
            if pick is None:
                if g == ngaps-1:
                    cur.append("s_nop 0"); slot += 1; continue
                break
            pos[pick] = slot; slot += 1; done += 1; left -= port_cost(chains[pick]); cur.append(chains[pick])
        out.append(cur)
    assert done == n
    return out
```

```python
import sys, struct
from asmlib import *
import sched
KN = "standalone__seq2seq_rnn_t_joint__speech_kernel"

def fbits(x):
    return "0x%08x" % struct.unpack("<I", struct.pack("<f", x))[0]

LOG2E = 1.4426950408889634
GC0 = -2.0 * LOG2E * 0.7978845608028654
GC1 = GC0 * 0.044715
TC = 2.0 * LOG2E

WS_H, WS_F, WS_EB, WS_BB, WS_FL, WS_STAMP, WS_FE = 0, 0x20000, 0x40000, 0x44000, 0x48000, 0x4c000, 0x50000
FL_H, FL_FA, FL_FEA, FL_GE, FL_FB, FL_FEB = range(6)
GP_AT = 0x80000
SX, SW1, SW2, SWF, SWG, SWO, SG, SOUT, SWS, SDBG, SWT = 8, 12, 16, 20, 24, 28, 32, 36, 40, 44, 92
def srd(b): return f"s[{b}:{b+3}]"
sW, sJ, sKC, sC, sQ, sB, sLW, sROT = 4, 5, 6, 7, 48, 49, 50, 51
sT0, sT1, sT2, sT3 = 3, 52, 53, 54
sA1, sB1, sCNT, sZM = 55, 56, 57, 58
sGC1, sWR, sTC, sFAST = 60, 61, 62, 63
STAMP0 = 64
sM2, sM4, sFE, sROT2, sSLOWT, sFO = 97, 98, 99, 100, 101, 96
CODE_LINES = 11
C1_A = [0, 57344]; C1_B = [32768, 90112]
lC, lD, lE, lP, lQ, lS, lA, lS1, lB = 0, 24576, 49152, 73728, 90112, 106496, 114688, 122880, 139264
PREP_AT = lA
C2_W = [lA, lB, lC, lD, lB, lC, lE, lD]
C2_H = [lP, lQ, lE, lS, lS1, lP, lQ, lS]
WF_AT = [lB, lB+8192, lB+16384, lS1, lS1+8192, lC, lC+8192, lC+16384]
F_AT = [lP, lD, lD+8192, lD+16384, lE, lE+8192, lE+16384, lQ]
EB_AT = lS
MID = 49152
JA = [0, 33280]
PASS_ROW = [0, 32, 16, 48]

class Gen:
    def __init__(self, stamps=False, clk="s_memrealtime", only=None, probe=None, forceslow=False, forceslowt=False, forcerare=False,
                 budget=26, pace=5, pace3=4, wt_w2=10, wt_early=4, wt_l2=4, wt_t0=14, jd2=7, jd3=2, flag_at=5, chk_at=(22, 28), t2_at=3,
                 abars=(1, 4), fra=2, wt_t0l=6, yearly=True, mallpf=1, s3rest=1, c2plan=("h3 w4", "h4 w5", "h5", "h6 w6", "h7 w7")):
        self.__dict__.update(locals()); del self.__dict__["self"]
        self.stubs = []; self.a = Asm(); self.nst = {"c": 1, "l": 1}; self.names = {"c": ["setup"], "l": ["setup"]}
    def stamp(self, role, name):
        if not self.stamps: return
        if self.only and name not in self.only and name != "drain": return
        if not self.only and name.startswith("x"): return
        if role == "j":
            n = max(self.nst.values())
            for r in "cl":
                while len(self.names[r]) < n: self.names[r].append("-")
                self.names[r].append(name); self.nst[r] = n+1
            i = n
        else:
            i = self.nst[role]; self.nst[role] += 1; self.names[role].append(name)
        assert i < 13
        self.a(f"{self.clk} s[{STAMP0+2*i}:{STAMP0+2*i+1}]")

    def prologue(self):
        self.a(f"""
    s_cmp_ge_u32 s2, 256
    s_cbranch_scc1 L_end
    {self.clk + " s[90:91]" if self.stamps else ""}
    s_load_dwordx16 s[64:79], s[0:1], 0      ; x w1 w2 g w_f w_g w_o out
    s_load_dwordx4 s[80:83], s[0:1], 64
    v_lshrrev_b32 v1, 6, v0
    v_and_b32 v0, 63, v0                     ; v0 = lane
    v_readfirstlane_b32 s{sW}, v1
    s_and_b32 s{sT0}, s2, 7
    s_lshr_b32 s{sT1}, s2, 3
    s_and_b32 s{sJ}, s{sT1}, 7               ; member
    s_lshr_b32 s{sKC}, s{sT1}, 3
    s_lshl_b32 s{sC}, s{sT0}, 2
    s_add_u32 s{sC}, s{sC}, s{sKC}
    s_lshr_b32 s{sB}, s{sC}, 4
    s_and_b32 s{sQ}, s{sC}, 15
    s_and_b32 s{sROT}, s{sJ}, 6
    s_add_u32 s{sROT}, s{sROT}, s{sT0}
L_pc:
    s_cmp_lt_u32 s{sW}, 4
    s_cbranch_scc1 L_compute""")
    def srd_first(self):
        self.a(f"""s_waitcnt lgkmcnt(0)
    s_mul_i32 s{sT0}, s{sB}, 4096000
    s_add_u32 s{SX}, s64, s{sT0}
    s_addc_u32 s{SX+1}, s65, 0
    s_mov_b32 s{SX+2}, 4096000
    s_mov_b32 s{SX+3}, 0x20000
    s_mov_b32 s{SW1}, s66
    s_mov_b32 s{SW1+1}, s67
    s_mov_b32 s{SW1+2}, 1572864
    s_mov_b32 s{SW1+3}, 0x20000""")
    def srd_rest(self):
        a = self.a
        for r, src, n in [(SW2, 68, 1572864), (SWF, 72, 524288), (SWG, 74, 524288), (SWO, 76, 524288), (SG, 70, 16384), (SDBG, 80, 256)]:
            a(f"s_mov_b32 s{r}, s{src}\ns_mov_b32 s{r+1}, s{src+1}\ns_mov_b32 s{r+2}, {n}\ns_mov_b32 s{r+3}, 0x20000")
        a(f"""s_mul_i32 s{sT0}, s{sB}, 1000
    s_mul_i32 s{sT1}, s{sQ}, 63
    s_add_u32 s{sT0}, s{sT0}, s{sT1}
    s_lshl_b32 s{sT0}, s{sT0}, 13
    s_add_u32 s{SOUT}, s78, s{sT0}
    s_addc_u32 s{SOUT+1}, s79, 0
    s_mov_b32 s{SOUT+2}, {63*8192}
    s_cmp_eq_u32 s{sQ}, 15
    s_cselect_b32 s{SOUT+2}, {55*8192}, s{SOUT+2}
    s_mov_b32 s{SOUT+3}, 0x20000
    s_lshl_b32 s{sT0}, s{sC}, 19
    s_add_u32 s{SWS}, s82, s{sT0}
    s_addc_u32 s{SWS+1}, s83, 0
    s_mov_b32 s{SWS+2}, 0x80000
    s_mov_b32 s{SWS+3}, 0x20000
    s_add_u32 s{SWT}, s82, 0x1000000
    s_addc_u32 s{SWT+1}, s83, 0
    s_mov_b32 s{SWT+2}, 0xc0000
    s_mov_b32 s{SWT+3}, 0x20000
    s_mov_b32 s{sROT2}, s{sJ}
    s_mov_b32 s{sGC1}, {fbits(GC1)}
    s_mov_b32 s{sGC1+1}, {fbits(GC1)}
    s_mov_b32 s{sTC}, {fbits(TC)}""")
        if self.stamps: a(f"s_mov_b32 s{STAMP0}, s90\ns_mov_b32 s{STAMP0+1}, s91")
    def slice_s(self, dst, which, shift):
        o = f"s_sub_u32 s{dst}, s{sJ}, s{sKC}\ns_add_u32 s{dst}, s{dst}, {self.jd2}" if which == 2 else f"s_add_u32 s{dst}, s{sJ}, {self.jd3}"
        return o + f"\ns_and_b32 s{dst}, s{dst}, 7" + (f"\ns_lshl_b32 s{dst}, s{dst}, {shift}" if shift else "")

    def stream16(self, groups, bar_at, drain, RA=3, RW=(3, 2), barhook=None, grouphook=None):
        a = self.a
        xbase = lambda i: 64 + 8*(i % (RA+1))
        wslot = {}; todo = {}
        for i, g in enumerate(groups):
            if g["w"] and g["w"][0] not in wslot:
                b = 96 + 8*(len(wslot) % 3); wslot[g["w"][0]] = b
                for nt, (breg, off) in enumerate(g["w"][1]):
                    for e in range(2):
                        todo.setdefault(i - RW[nt], []).append((i, ("w", g["w"][0]), f"ds_read_b64_tr_b16 v[{b+4*nt+2*e}:{b+4*nt+2*e+1}], v{breg} offset:{off + 512*e}"))
            for xi, (areg, off) in enumerate(g["x"]):
                todo.setdefault(i - RA, []).append((i, ("x", i, xi), f"ds_read_b128 v[{xbase(i)+4*xi}:{xbase(i)+4*xi+3}], v{areg} offset:{off}"))
        q = []; bars = sorted(bar_at); done = set(); issued = []
        def issue(item):
            u = max((b for b in bars if b <= item[0]), default=None)
            if u is not None and u not in done:
                assert all(b in done for b in bars if b < u)
                assert not any(it[0] < u for lst in todo.values() for it in lst if it not in issued)
                done.add(u)
                if drain and u > 0: a("s_waitcnt lgkmcnt(0)")
                a("s_barrier")
                if barhook: barhook(bars.index(u))
            a(item[2]); q.append(item[1]); issued.append(item)
        for at in sorted(k for k in todo if k < 0):
            for item in sorted(todo[at], key=lambda t: t[0]): issue(item)
        for i, g in enumerate(groups):
            rd = sorted(todo.get(i, []), key=lambda t: t[0]); k = 0; plast = -1
            if grouphook: grouphook(i)
            for m, (d, w, xi, first) in enumerate(g["mf"]):
                need = [("x", i, xi)] + ([("w", g["w"][0])] if g["w"] else [])
                last = max(j for j, t in enumerate(q) if t in need)
                if last > plast:
                    assert len(q) - 1 - last <= 15
                    a(f"s_waitcnt lgkmcnt({len(q) - 1 - last})"); plast = last
                if g["w"]: w = f"v[{wslot[g['w'][0]]+4*w}:{wslot[g['w'][0]]+4*w+3}]"
                x = xbase(i) + 4*xi
                a(f"v_mfma_f32_16x16x32_bf16 v[{d}:{d+3}], {w}, v[{x}:{x+3}], {'0' if first else f'v[{d}:{d+3}]'}")
                k2 = (len(rd)*(m+1) + 3)//4
                for item in rd[k:k2]: issue(item)
                k = k2

    def gelu_pack(self, acc, n, out):
        a = self.a; p = lambda r: f"v[{r}:{r+1}]"
        R = [acc+2*i for i in range(n//2)]; T = [96+2*i for i in range(n//2)]
        for r, t in zip(R, T): a(f"v_pk_mul_f32 {p(t)}, {p(r)}, {p(r)}")
        for r, t in zip(R, T): a(f"v_pk_fma_f32 {p(t)}, {p(t)}, s[{sGC1}:{sGC1+1}], v[24:25]")
        for r, t in zip(R, T): a(f"v_pk_mul_f32 {p(t)}, {p(t)}, {p(r)}")
        for i in range(n): a(f"v_exp_f32 v{96+i}, v{96+i}")
        for r, t in zip(R, T): a(f"v_pk_add_f32 {p(t)}, {p(t)}, 1.0 op_sel_hi:[1,0]")
        for i in range(n): a(f"v_rcp_f32 v{96+i}, v{96+i}")
        for r, t in zip(R, T): a(f"v_pk_mul_f32 {p(t)}, {p(t)}, {p(r)}")
        for i, t in enumerate(T): a(f"v_cvt_pk_bf16_f32 v{out+i}, v{t}, v{t+1}")
    def swap(self, out, nq):
        self.a("s_nop 1")
        for k in range(nq):
            for i in range(2): self.a(f"v_permlane16_swap_b32 v{out+4*k+i}, v{out+4*k+2+i}")
    def xstore(self, lines):
        a = self.a; S = a.label("L_xs"); D = a.label("L_xd")
        a(f"s_cmp_eq_u32 s{sFAST}, 0\ns_cbranch_scc1 {S}")
        for l in lines: a(l)
        a(f"{D}:")
        self.stubs += [f"{S}:"] + [l + " sc1" for l in lines] + [f"s_branch {D}"]
    def tile_store(self, base, voff, pk, steps):
        a = self.a
        a(f"s_lshr_b32 s{sT1}, s{sW}, 1\ns_lshl_b32 s{sT1}, s{sT1}, 12\ns_add_u32 s{sT1}, s{sT1}, {base}")
        self.xstore([f"buffer_store_dwordx4 v[{pk+4*i}:{pk+4*i+3}], v{voff}, {srd(SWS)}, s{sT1} offen offset:{st}" for i, st in enumerate(steps)])
    def set_flag(self, line, val=3, addr=2, younger=0):
        a = self.a
        a(f"s_waitcnt vmcnt({younger})\ns_mov_b64 exec, 1")
        self.xstore([f"buffer_store_dword v{val}, v{addr}, {srd(SWS)}, 0 offen offset:{line*128}"])
        a("s_mov_b64 exec, -1")
    def range_flag(self, dst, regs):
        a = self.a
        a(f"v_max3_f32 v{dst}, abs(v{regs[0]}), abs(v{regs[1]}), abs(v{regs[2]})")
        for i in range(3, len(regs)-1, 2): a(f"v_max3_f32 v{dst}, abs(v{regs[i]}), abs(v{regs[i+1]}), v{dst}")
        a(f"v_max_f32 v{dst}, abs(v{regs[-1]}), v{dst}\nv_cmp_lt_f32 vcc, 0x421c0000, v{dst}\ns_cmp_lg_u64 vcc, 0\ns_cselect_b32 s{sT0}, 3, 1\nv_mov_b32 v{dst}, s{sT0}")
    def flag_load(self, voff, line):
        return f"buffer_load_dword v4, v{voff}, {srd(SWS)}, 0 offen offset:{line*128} sc1"
    def poll(self, voff, line):
        a = self.a; L = a.label("L_poll"); D = a.label("L_got")
        a(f"""s_mov_b32 s{sCNT}, 0
{L}:
    {self.flag_load(voff, line)}
    s_add_u32 s{sCNT}, s{sCNT}, 1
    s_cmp_gt_u32 s{sCNT}, 200000
    s_cbranch_scc1 {D}
    s_waitcnt vmcnt(0)
    v_cmp_eq_u32 vcc, 0, v4
    s_cbranch_vccnz {L}
{D}:
    s_waitcnt vmcnt(0)""")
    def pubcheck(self, vp, vaddr, first_wait=True):
        a = self.a; L = a.label("L_pub"); D = a.label("L_pubd"); E = a.label("L_pube")
        a(f"s_mov_b32 s{sCNT}, 0\ns_lshl_b32 s{sT2}, s{sC}, 1\ns_add_u32 s{sT3}, s{sT2}, 1")
        if not first_wait: a(f"s_branch {E}")
        a(f"""{L}:
    s_waitcnt vmcnt(0)
{E}:
    v_and_b32 v4, 0x80808080, v{vp}
    v_cmp_ne_u32 vcc, 0x80808080, v4
    s_cbranch_vccz {D}
    s_add_u32 s{sCNT}, s{sCNT}, 1
    s_cmp_gt_u32 s{sCNT}, 200000
    s_cbranch_scc1 {D}
    buffer_load_dword v{vp}, v{vaddr}, {srd(SDBG)}, 0 offen sc1
    s_branch {L}
{D}:
    v_readlane_b32 s{sT0}, v{vp}, s{sT2}
    v_readlane_b32 s{sT1}, v{vp}, s{sT3}
    s_and_b32 s{sT2}, s{sT0}, 0xff
    s_mul_i32 s{sT2}, s{sT2}, 0x01010101
    s_xor_b32 s{sT0}, s{sT0}, s{sT2}
    s_xor_b32 s{sT1}, s{sT1}, s{sT2}
    s_or_b32 s{sT0}, s{sT0}, s{sT1}
    s_cmp_eq_u32 s{sT0}, 0
    s_cselect_b32 s{sFAST}, {0 if self.forceslow else 1}, 0
    s_cmp_eq_u32 s{sFAST}, 0
    s_cselect_b32 s{sFE}, {WS_FE}, {WS_H}""")

    def act_addrs(self, dst, rowbase_s, shift, add):
        a = self.a
        a(f"v_and_b32 v26, 15, v0")
        if shift: a(f"v_add_u32 v26, {shift}, v26")
        a(f"""v_and_b32 v27, 6, v26
    v_lshrrev_b32 v30, 4, v0
    v_xor_b32 v27, v27, v30
    v_lshlrev_b32 v27, 4, v27
    v_lshl_add_u32 v27, v26, 7, v27
    v_add_u32 v{dst}, s{rowbase_s}, v27""")
        if add: a(f"v_add_u32 v{dst}, {add}, v{dst}")
        a(f"v_xor_b32 v{dst+1}, 64, v{dst}")
    def compute_setup(self):
        a = self.a
        a("L_compute:")
        self.srd_first(); self.srd_rest()
        a(f"""
    s_lshl_b32 s{sT0}, s{sJ}, 2
    s_add_u32 s{sT0}, s{sT0}, s{sW}
    s_lshl_b32 s{sT0}, s{sT0}, 2
    s_add_u32 s{sT0}, s{sT0}, {WS_FL}
    v_mov_b32 v2, s{sT0}
    v_mov_b32 v3, 1
    s_getreg_b32 s{sT1}, hwreg(HW_REG_XCC_ID, 0, 4)
    s_or_b32 s{sT1}, s{sT1}, 0x80
    v_mov_b32 v120, s{sT1}
    s_lshl_b32 s{sT1}, s{sC}, 3
    s_add_u32 s{sT1}, s{sT1}, s{sJ}
    v_mov_b32 v121, s{sT1}
    s_cmp_lg_u32 s{sW}, 0
    s_cbranch_scc1 L_noclear
    v_lshrrev_b32 v4, 2, v0
    v_lshlrev_b32 v4, 7, v4
    v_and_b32 v5, 3, v0
    v_lshl_add_u32 v4, v5, 2, v4
    v_add_u32 v4, s{sT0}, v4
    v_mov_b32 v5, 0
    s_mov_b64 exec, 0xffffff
    buffer_store_dword v5, v4, {srd(SWS)}, 0 offen sc1
    s_mov_b64 exec, -1
    v_lshrrev_b32 v26, 3, v0
    v_and_b32 v27, 7, v0
    v_bfe_u32 v28, v0, 4, 1
    v_lshlrev_b32 v28, 2, v28
    v_xor_b32 v28, v28, v27
    v_lshlrev_b32 v28, 4, v28
    v_lshl_add_u32 v28, v26, 10, v28
    s_and_b32 s{sT1}, s2, 7
    s_lshl_b32 s{sT1}, s{sT1}, 7
    v_add_u32 v28, s{sT1}, v28
    v_add_u32 v29, 7168, v28
    s_mov_b32 m0, {PREP_AT}
    s_lshr_b32 s{sT1}, s2, 3
    s_lshl_b32 s{sT1}, s{sT1}, 14
    buffer_load_dwordx4 v28, {srd(SWO)}, s{sT1} offen lds
    buffer_load_dwordx4 v29, {srd(SWO)}, s{sT1} offen offset:1024 lds
    s_lshr_b32 s{sT1}, s2, 3
    s_and_b32 s{sT2}, s{sT1}, 3
    s_and_b32 s{sT3}, s2, 7
    s_lshl_b32 s{sT3}, s{sT3}, 2
    s_add_u32 s{sT2}, s{sT2}, s{sT3}
    s_lshr_b32 s{sT1}, s{sT1}, 2
    s_lshl_b32 s{sA1}, s{sT2}, 3
    s_add_u32 s{sA1}, s{sA1}, s{sT1}
    s_lshl_b32 s{sA1}, s{sA1}, 10
    s_add_u32 s{sA1}, s{sA1}, {GP_AT}
    v_lshrrev_b32 v28, 1, v0
    v_and_b32 v29, 1, v0
    v_lshlrev_b32 v29, 4, v29
    v_lshl_add_u32 v28, v28, 10, v29
    v_add_u32 v29, {32768-1024}, v28
    s_mov_b32 m0, {PREP_AT + 2048}
    s_lshl_b32 s{sT3}, s{sT1}, 16
    s_lshl_b32 s{sT2}, s{sT2}, 5
    s_add_u32 s{sT3}, s{sT3}, s{sT2}
    buffer_load_dwordx4 v28, {srd(SWG)}, s{sT3} offen lds
    buffer_load_dwordx4 v29, {srd(SWG)}, s{sT3} offen offset:1024 lds
    v_lshlrev_b32 v27, 4, v27
    v_lshl_add_u32 v28, v26, 10, v27
    v_add_u32 v29, 7168, v28
    s_mov_b32 m0, {PREP_AT + 4096}
    s_lshl_b32 s{sT3}, s{sT1}, 7
    buffer_load_dwordx4 v28, {srd(SG)}, s{sT3} offen lds
    buffer_load_dwordx4 v29, {srd(SG)}, s{sT3} offen offset:1024 lds
L_noclear:
    v_lshlrev_b32 v7, 2, v0
    s_cmp_lg_u32 s{sW}, 1
    s_cbranch_scc1 L_notouch
    s_getpc_b64 s[{sZM}:{sZM+1}]
L_pc0:
    s_sub_u32 s{sZM}, s{sZM}, L_pc0-L_pc
    s_subb_u32 s{sZM+1}, s{sZM+1}, 0
    s_lshr_b32 s{sT1}, s2, 3
    s_mul_i32 s{sT1}, s{sT1}, {CODE_LINES*128}
    v_lshlrev_b32 v26, 7, v0
    v_add_u32 v26, s{sT1}, v26
    v_cmp_gt_u32 vcc, L_end-L_pc, v26
    s_and_b32 vcc_lo, vcc_lo, {(1 << CODE_LINES)-1}
    s_mov_b32 vcc_hi, 0
    v_mov_b32 v27, s{sZM+1}
    s_and_saveexec_b64 s[84:85], vcc
    s_cbranch_execz L_notouch2
    v_add_co_u32 v26, vcc, s{sZM}, v26
    s_nop 1
    v_addc_co_u32 v27, vcc, 0, v27, vcc
    global_load_dword v31, v[26:27], off
L_notouch2:
    s_mov_b64 exec, -1
L_notouch:
    s_and_b32 s{sT0}, s{sW}, 1               ; wn
    s_lshr_b32 s{sT1}, s{sW}, 1              ; wm
    v_lshrrev_b32 v27, 4, v0                 ; g
    v_bfe_u32 v26, v0, 2, 2                  ; r4
    v_lshl_add_u32 v28, v27, 3, v26
    v_lshlrev_b32 v28, 7, v28
    v_lshrrev_b32 v26, 1, v26
    v_and_b32 v29, 1, v27
    v_lshl_add_u32 v26, v29, 1, v26
    s_lshl_b32 s{sT2}, s{sT0}, 1
    v_xor_b32 v26, s{sT2}, v26
    v_lshl_add_u32 v28, v26, 5, v28
    v_and_b32 v26, 3, v0
    v_lshl_add_u32 v16, v26, 3, v28
    v_xor_b32 v17, 32, v16
    v_add_u32 v18, 57344, v16
    v_add_u32 v19, 57344, v17
    v_and_b32 v26, 15, v0
    v_lshrrev_b32 v28, 1, v27
    v_lshl_add_u32 v27, v29, 1, v28
    s_lshl_b32 s{sT2}, s{sT0}, 2
    v_add_u32 v27, s{sT2}, v27
    v_lshrrev_b32 v29, 1, v26
    v_and_b32 v28, 6, v29
    v_xor_b32 v28, v28, v27
    v_lshlrev_b32 v28, 4, v28
    v_lshl_add_u32 v28, v29, 7, v28
    v_and_b32 v30, 1, v26
    v_lshl_add_u32 v28, v30, 13, v28
    s_lshl_b32 s{sT2}, s{sJ}, 14
    v_add_u32 v5, s{sT2}, v28
    v_lshlrev_b32 v28, 4, v27
    v_lshl_add_u32 v28, v26, 7, v28
    {self.slice_s(sT2, 3, 14)}
    v_add_u32 v23, s{sT2}, v28
    v_and_b32 v28, 6, v26
    v_xor_b32 v28, v28, v27
    v_lshlrev_b32 v28, 4, v28
    v_lshl_add_u32 v28, v26, 7, v28
    {self.slice_s(sT2, 2, 13)}
    v_add_u32 v22, s{sT2}, v28
    s_or_b32 s{sT2}, s{sQ}, s{sT1}
    s_cmp_eq_u32 s{sT2}, 0
    s_cselect_b32 s{sZM}, 0x00010001, 0
    s_mov_b32 s{sZM+1}, s{sZM}
    s_lshl_b32 s{sT2}, s{sT1}, 13
    v_mov_b32 v24, {fbits(GC0)}
    v_mov_b32 v25, {fbits(GC0)}""")
        self.act_addrs(8, sT2, 0, 0)
        self.act_addrs(10, sT2, 1, 0)
        for i in range(4): a(f"v_add_u32 v{12+i}, 57344, v{8+i}")
        a(f"""s_cmp_lg_u32 s{sW}, 0
    s_cbranch_scc1 L_noprep
    v_bfe_u32 v26, v0, 2, 2
    v_lshrrev_b32 v27, 5, v0
    v_lshl_add_u32 v27, v27, 3, v26
    v_lshlrev_b32 v27, 7, v27
    v_and_b32 v28, 1, v0
    v_lshlrev_b32 v28, 1, v28
    v_bfe_u32 v29, v0, 4, 1
    v_add_u32 v28, v28, v29
    v_bfe_u32 v29, v0, 3, 1
    v_lshlrev_b32 v29, 2, v29
    v_xor_b32 v28, v28, v29
    v_lshl_add_u32 v27, v28, 4, v27
    v_bfe_u32 v29, v0, 1, 1
    v_lshl_add_u32 v26, v29, 3, v27
    v_add_u32 v26, {PREP_AT}, v26
    v_xor_b32 v27, 64, v26
    s_and_b32 s{sT0}, s2, 7
    s_lshl_b32 s{sT0}, s{sT0}, 16
    s_lshr_b32 s{sT1}, s2, 3
    s_lshl_b32 s{sT1}, s{sT1}, 10
    s_add_u32 s{sT0}, s{sT0}, s{sT1}
    s_add_u32 s{sT1}, s{sT0}, 32768
    v_lshlrev_b32 v30, 4, v0
    v_lshrrev_b32 v28, 4, v0
    v_bfe_u32 v29, v0, 2, 2
    v_lshl_add_u32 v29, v28, 3, v29
    v_lshlrev_b32 v29, 5, v29
    v_and_b32 v31, 3, v0
    v_lshl_add_u32 v29, v31, 3, v29
    v_add_u32 v29, {PREP_AT + 2048}, v29
    v_and_b32 v31, 15, v0
    v_lshlrev_b32 v31, 7, v31
    v_lshl_add_u32 v28, v28, 4, v31
    v_add_u32 v28, {PREP_AT + 4096}, v28
    s_waitcnt vmcnt(0)
    ds_read_b64_tr_b16 v[40:41], v29
    ds_read_b64_tr_b16 v[42:43], v29 offset:128
    ds_read_b128 v[44:47], v28
    ds_read_b64_tr_b16 v[48:49], v29 offset:1024
    ds_read_b64_tr_b16 v[50:51], v29 offset:1152
    ds_read_b128 v[52:55], v28 offset:64
    ds_read_b64_tr_b16 v[32:33], v26
    ds_read_b64_tr_b16 v[34:35], v26 offset:512
    ds_read_b64_tr_b16 v[36:37], v27
    ds_read_b64_tr_b16 v[38:39], v27 offset:512
    s_waitcnt lgkmcnt(0)
    v_mfma_f32_16x16x32_bf16 v[56:59], v[40:43], v[44:47], 0
    v_mfma_f32_16x16x32_bf16 v[56:59], v[48:51], v[52:55], v[56:59]
    buffer_store_dwordx4 v[32:35], v30, {srd(SWT)}, s{sT0} offen sc1
    buffer_store_dwordx4 v[36:39], v30, {srd(SWT)}, s{sT1} offen sc1
    s_nop 7
    buffer_store_dwordx4 v[56:59], v30, {srd(SWT)}, s{sA1} offen sc1
L_noprep:""")
    def touch(self, w, sr, n, stride, chip, imm):
        a = self.a; L = a.label("L_tc"); n = -(-n*8//7)
        a(f"""s_cmp_lg_u32 s{sW}, {w}
    s_cbranch_scc1 {L}
    s_cmp_eq_u32 s{sJ}, 3
    s_cbranch_scc1 {L}
    s_mul_i32 s{sT0}, s{sC if chip else sKC}, 7
    s_add_u32 s{sT0}, s{sT0}, s{sJ}
    s_cmp_gt_u32 s{sJ}, 3
    s_subb_u32 s{sT0}, s{sT0}, 0
    s_mul_i32 s{sT0}, s{sT0}, {n*stride}
    v_lshlrev_b32 v30, {stride.bit_length()-1}, v0
    s_mov_b32 exec_lo, {hex((1 << min(n, 32))-1)}
    s_mov_b32 exec_hi, {hex((1 << max(n-32, 0))-1)}
    buffer_load_dword v31, v30, {srd(sr)}, s{sT0} offen offset:{imm}
    s_mov_b64 exec, -1
{L}:""")

    def conv1(self):
        a = self.a; groups = []; bar_at = set()
        for ch in range(8):
            par = ch % 2
            for (unit, taps) in (("A", (0, 2)), ("B", (1,))):
                bar_at.add(len(groups))
                for tap in taps:
                    for sk in range(2):
                        if unit == "A": xoff = 0; woff = 16384 + (tap//2)*8192; areg = (8 if tap == 0 else 10) + sk
                        else: xoff = 32768; woff = 32768 + 16384; areg = 8 + sk
                        for hf in range(2):
                            groups.append(dict(x=[(areg + 4*par, xoff + (2*hf + mt)*2048) for mt in range(2)],
                                               w=((ch, tap, sk), [(16 + 2*par + nt, woff + sk*4096) for nt in range(2)]),
                                               mf=[(32 + 16*hf + 4*m, m % 2, m//2, len(groups) < 2) for m in range(4)]))
        def hook(u):
            if u == 1:
                L = a.label("L_pb")
                a(f"s_cmp_lg_u32 s{sW}, 0\ns_cbranch_scc1 {L}\ns_mov_b64 exec, 1\ns_waitcnt vmcnt(0)\nbuffer_store_byte v120, v121, {srd(SDBG)}, 0 offen sc1\ns_mov_b64 exec, -1\n{L}:")
            if u == self.mallpf:
                self.touch(1, SW2, 48, 128, True, 0); self.touch(2, SWF, 16, 128, True, 0)
            if u == self.s3rest:
                self.touch(1, SW2, 48, 1024, False, 384); self.touch(3, SWF, 16, 1024, False, 384)
            if u == 11: a(f"buffer_load_dword v28, v7, {srd(SDBG)}, 0 offen sc1")
            if u == 14: self.pubcheck(28, 7)
        self.stream16(groups, bar_at, True, barhook=hook)
        self.stamp("c", "c1mfma")
        a("s_nop 7")
        for hf in range(2):
            pk = 112 + 8*hf
            self.gelu_pack(32+16*hf, 16, pk)
            self.swap(pk, 2)
            if hf == 0:
                a("s_nop 1")
                for i in range(4): a(f"v_cndmask_b32 v{pk+i}, v{pk+i}, 0, s[{sZM}:{sZM+1}]")
            self.tile_store(WS_H + hf*2048, 5, pk, (0, 1024))
        a(f"s_lshr_b32 s{sT1}, s{sW}, 1\ns_lshl_b32 s{sT1}, s{sT1}, 12\ns_add_u32 s{sT1}, s{sT1}, {C2_H[0]}\nv_and_b32 v26, 0x3fff, v5\nv_add_u32 v26, s{sT1}, v26")
        for i in range(4): a(f"ds_write_b128 v26, v[{112+4*i}:{115+4*i}] offset:{1024*i}")
        self.stamp("c", "xc1epi")
        self.set_flag(FL_H)
        self.stamp("c", "c1flag")

    def base3(self, lo, mid, hi, addr):
        if addr >= 114688: return hi, addr - 114688
        if addr >= MID: return mid, addr - MID
        return lo, addr
    def conv2(self):
        a = self.a
        a(f"s_lshr_b32 s{sT1}, s{sW}, 1\ns_lshl_b32 s{sT2}, s{sT1}, 12")
        self.act_addrs(8, sT2, 0, lE)
        self.act_addrs(10, sT2, 1, lE)
        for i in range(4): a(f"v_add_u32 v{12+i}, {lS-lE}, v{8+i}")
        for nt in range(2): a(f"v_add_u32 v{18+nt}, {MID}, v{16+nt}\nv_add_u32 v{20+nt}, 114688, v{16+nt}")
        a("s_waitcnt lgkmcnt(0)\ns_barrier")
        taps = (0, 2, 1)
        def wreg(n, e=None):
            f, r = ("a", 4*n) if n < 32 else ("v", 48+4*(n-32))
            return f"{f}[{r}:{r+3}]" if e is None else f"{f}[{r+2*e}:{r+2*e+1}]"
        groups = []; bar_at = set()
        for v in range(8):
            h, hr = (C2_H[v] - lE, 0) if C2_H[v] < lS else (C2_H[v] - lS, 4)
            breg, wb = self.base3(16, 18, 20, C2_W[v])
            if v: bar_at.add(len(groups))
            for i in range(6):
                tap, sk = taps[i//2], i % 2
                areg = (10 if tap == 2 else 8) + sk + hr; aoff = h + (8192 if tap == 1 else 0); boff = wb + tap*8192 + sk*4096
                x = [(areg, aoff + mt*2048) for mt in range(2)]
                if v < 3:
                    for nt in range(2):
                        for e in range(2): a(f"ds_read_b64_tr_b16 {wreg(12*v+2*i+nt, e)}, v{breg+nt} offset:{boff + 512*e}")
                    if i % 2 == 1: a("s_waitcnt lgkmcnt(4)")
                    groups.append(dict(x=x, w=None, mf=[(32+4*m, wreg(12*v+2*i + m % 2), m//2, not groups) for m in range(4)]))
                else:
                    groups.append(dict(x=x, w=((v, i), [(breg+nt, boff) for nt in range(2)]), mf=[(32+4*m, m % 2, m//2, False) for m in range(4)]))
        a("s_waitcnt lgkmcnt(0)")
        self.stream16(groups, bar_at, False, RA=2, RW=(2, 2))
        self.stamp("c", "c2mfma")
        a(f"""v_and_b32 v26, 15, v0
    v_lshrrev_b32 v27, 4, v0
    v_lshlrev_b32 v13, 8, v26
    v_lshl_add_u32 v13, v27, 4, v13
    s_lshl_b32 s{sT0}, s{sJ}, 11
    s_lshl_b32 s{sT1}, s{sW}, 6
    s_add_u32 s{sT0}, s{sT0}, s{sT1}
    v_add_u32 v13, s{sT0}, v13
    v_lshlrev_b32 v28, 4, v26
    v_lshl_add_u32 v28, v27, 8, v28
    s_lshl_b32 s{sT0}, s{sJ}, 2
    s_add_u32 s{sT0}, s{sT0}, s{sW}
    s_lshl_b32 s{sT0}, s{sT0}, 13
    s_lshl_b32 s{sT1}, s{sB}, 7
    s_add_u32 s{sT0}, s{sT0}, s{sT1}
    s_add_u32 s{sT0}, s{sT0}, {GP_AT}
    s_add_u32 s{sT1}, s{sT0}, 4096
    s_mov_b32 exec_lo, 0x00ff00ff
    s_mov_b32 exec_hi, 0x00ff00ff""")
        for p in range(8):
            a(f"buffer_load_dwordx4 v[{64+4*p}:{67+4*p}], v28, {srd(SWT)}, s{sT0 if p < 4 else sT1} offen offset:{(p % 4)*1024} sc1")
        a("s_mov_b64 exec, -1")
        for mt in range(2):
            self.gelu_pack(32+8*mt, 8, 120+4*mt)
            self.swap(120+4*mt, 1)
            self.tile_store(WS_F + mt*2048, 22, 120+4*mt, (0,))
        a(f"s_lshr_b32 s{sT1}, s{sW}, 1\ns_lshl_b32 s{sT1}, s{sT1}, 12\ns_add_u32 s{sT1}, s{sT1}, {F_AT[0]}\nv_and_b32 v30, 0x1fff, v22\nv_add_u32 v30, s{sT1}, v30")
        for i in range(2): a(f"ds_write_b128 v30, v[{120+4*i}:{123+4*i}] offset:{2048*i}")
        self.set_flag(FL_FA, younger=1)
        self.stamp("c", "c2flag")
        if self.yearly: a("s_waitcnt lgkmcnt(0)\ns_barrier")
        p = lambda r: f"v[{r}:{r+1}]"
        for st in (4, 8, 16):
            for r in range(64, 96, 2*st):
                for h in (0, 2): a(f"v_pk_add_f32 {p(r+h)}, {p(r+h)}, {p(r+st+h)}")
        self.set_flag(FL_FB, younger=1)
        if not self.yearly: a("s_waitcnt lgkmcnt(0)\ns_barrier")

    def ge_fe(self):
        a = self.a
        a(f"""v_cvt_pk_bf16_f32 v36, v64, v65
    v_cvt_pk_bf16_f32 v37, v66, v67
    v_lshlrev_b32 v32, 16, v36
    v_and_b32 v33, 0xffff0000, v36
    v_lshlrev_b32 v34, 16, v37
    v_and_b32 v35, 0xffff0000, v37
    s_mov_b32 exec_lo, 0x00ff00ff
    s_mov_b32 exec_hi, 0x00ff00ff""")
        self.range_flag(14, [32, 33, 34, 35])
        for i in range(4): a(f"v_mul_f32 v{32+i}, s{sTC}, v{32+i}")
        for i in range(4): a(f"v_exp_f32 v{40+i}, v{32+i}")
        a(f"s_mov_b32 s{sT1}, {WS_EB}\ns_mov_b32 s{sT2}, {WS_BB}")
        self.xstore([f"buffer_store_dwordx4 v[40:43], v13, {srd(SWS)}, s{sT1} offen", f"buffer_store_dwordx4 v[32:35], v13, {srd(SWS)}, s{sT2} offen"])
        a("s_mov_b64 exec, -1")
        a(f"s_lshr_b32 s{sT1}, s{sW}, 1\ns_lshl_b32 s{sT2}, s{sT1}, 12")
        self.act_addrs(8, sT2, 0, 0)
        for sk in range(2): a(f"v_add_u32 v{10+sk}, {MID}, v{8+sk}")
        self.stamp("c", "xge")
        for c in range(8):
            breg, wb = self.base3(16, 18, 20, WF_AT[c])
            for sk in range(2):
                for nt in range(2):
                    for e in range(2):
                        r = 16*c + 8*sk + 4*nt + 2*e
                        a(f"ds_read_b64_tr_b16 a[{r}:{r+1}], v{breg+nt} offset:{wb + sk*4096 + 512*e}")
            a("s_waitcnt lgkmcnt(4)")
        a("s_waitcnt lgkmcnt(0)")
        for mt in range(2):
            groups = []
            for c in range(8):
                areg, ab = self.base3(8, 10, None, F_AT[c])
                groups.append(dict(x=[(areg+sk, ab + mt*2048) for sk in range(2)], w=None,
                                   mf=[(32 + 8*mt + 4*(m % 2), f"a[{16*c+4*m}:{16*c+4*m+3}]", m//2, c == 0 and m < 2) for m in range(4)]))
            if mt == 0:
                self.stream16(groups, set(self.abars), False, RA=self.fra,
                              barhook=lambda i: (self.stamp("c", f"xfb{i}"), self.set_flag(FL_GE, val=14) if i == 0 else None))
                self.stamp("c", "femfma")
            else:
                self.stream16(groups, {1}, False, RA=self.fra,
                              grouphook=lambda i: (self.set_flag(FL_FEA, val=12), self.stamp("c", "feflag")) if i == self.flag_at else None)
            a("s_nop 7")
            for i in range(4): a(f"v_cvt_pk_bf16_f32 v{120+4*mt+i}, v{32+8*mt+2*i}, v{33+8*mt+2*i}")
            self.swap(120+4*mt, 1)
            self.tile_store(f"s{sFE}", 23, 120+4*mt, (2048*mt,))
            self.range_flag(12 if mt == 0 else 29, list(range(32+8*mt, 40+8*mt)))
        self.stamp("c", "xfeb")
        self.joint_setup()

    def dma(self, vreg, s, soff, imm, flags=""):
        if self.cur[0] in ("w2p", "wf") and len(self.q) > self.pace: self.a(f"s_waitcnt vmcnt({self.pace})")
        self.a(f"buffer_load_dwordx4 v{vreg}, {srd(s)}, {soff} offen" + (f" offset:{imm}" if imm else "") + f" {flags} lds")
        self.q.append(self.cur)
    def m0(self, const, sreg):
        self.a(f"s_add_u32 m0, s{sreg}, {const}")
    def wait_unit(self, *names):
        n = len(self.q) - 1 - max(i for i, x in enumerate(self.q) if x in names)
        assert n < 64
        self.a(f"s_waitcnt vmcnt({n})")
    def loader_setup(self):
        self.a(f"""s_and_b32 s{sLW}, s{sW}, 3
    s_lshl_b32 s{sM4}, s{sLW}, 12
    v_lshrrev_b32 v1, 3, v0
    v_and_b32 v2, 7, v0
    v_and_b32 v3, 6, v1
    v_xor_b32 v4, v2, v3
    v_lshlrev_b32 v4, 4, v4
    s_mul_i32 s{sT0}, s{sQ}, 252
    s_lshl_b32 s{sT1}, s{sLW}, 6
    s_add_u32 s{sT0}, s{sT0}, s{sT1}
    s_sub_u32 s{sT0}, s{sT0}, 3
    v_lshl_add_u32 v6, v1, 1, s{sT0}
    v_lshl_add_u32 v8, v6, 10, v4
    v_add_u32 v9, {15360}, v8
    v_add_u32 v10, {2*15360}, v8
    v_add_u32 v11, {3*15360}, v8
    v_add_u32 v12, 1024, v8
    v_add_u32 v13, 1024, v9
    v_add_u32 v14, 1024, v10
    v_add_u32 v15, 1024, v11
    v_bfrev_b32 v29, 1
    v_cmp_gt_i32 vcc, 0, v8
    v_cmp_gt_i32 s[84:85], 0, v12
    v_and_b32 v28, 2, v1
    v_xor_b32 v28, v28, v2
    v_cndmask_b32 v8, v8, v29, vcc
    v_cndmask_b32 v12, v12, v29, s[84:85]
    v_lshlrev_b32 v28, 4, v28
    v_lshl_add_u32 v28, v1, 10, v28
    s_lshl_b32 s{sT0}, s{sJ}, 7
    v_add_u32 v16, s{sT0}, v28
    v_xor_b32 v5, 64, v16
    v_add_u32 v17, 7168, v5
    v_add_u32 v18, {2*7168}, v16
    v_add_u32 v19, {3*7168}, v5
    s_lshr_b32 s{sT0}, s{sLW}, 1
    s_lshl_b32 s{sT0}, s{sT0}, 20
    s_and_b32 s{sT1}, s{sLW}, 1
    s_lshl_b32 s{sT1}, s{sT1}, 15
    s_add_u32 s{sA1}, s{sT0}, s{sT1}
    s_lshl_b32 s{sB1}, s{sLW}, 14
    s_lshl_b32 s{sM2}, s{sLW}, 11""")
        self.srd_first()
        self.q = []
    def loader_setup2(self):
        self.a(f"""v_lshlrev_b32 v6, 4, v0
    v_add_u32 v20, s{sM4}, v6
    s_lshr_b32 s{sFO}, s{sLW}, 1
    s_lshl_b32 s{sFO}, s{sFO}, 12
    s_and_b32 s{sT0}, s{sLW}, 1
    s_lshl_b32 s{sT0}, s{sT0}, 10
    s_add_u32 s{sFO}, s{sFO}, s{sT0}
    v_add_u32 v24, s{sFO}, v6
    {self.slice_s(sT0, 3, 7)}
    v_add_u32 v25, s{sT0}, v28
    v_xor_b32 v26, 64, v25
    v_add_u32 v26, 7168, v26
    {self.slice_s(sT0, 2, 7)}
    v_add_u32 v21, s{sT0}, v28
    v_xor_b32 v22, 64, v21
    v_add_u32 v22, 7168, v22
    v_and_b32 v28, 31, v0
    v_lshlrev_b32 v28, 2, v28
    v_add_u32 v28, {WS_FL}, v28
    v_lshlrev_b32 v3, 7, v0
    s_lshl_b32 s{sT0}, s{sJ}, 14
    s_lshl_b32 s{sT1}, s{sLW}, 13
    s_add_u32 s{sT0}, s{sT0}, s{sT1}
    {self.slice_s(sT1, 2, 13)}
    s_add_u32 s{sT1}, s{sT1}, {WS_F}
    s_cmp_eq_u32 s{sLW}, 2
    s_cselect_b32 s{sT0}, s{sT1}, s{sT0}
    v_add_u32 v30, s{sT0}, v3
    s_cmp_lg_u32 s{sLW}, 3
    s_cbranch_scc1 L_tv
    v_and_b32 v30, 15, v0
    v_lshlrev_b32 v30, 7, v30
    v_lshrrev_b32 v29, 4, v0
    v_lshl_add_u32 v30, v29, 14, v30
    s_lshl_b32 s{sT1}, s{sJ}, 11
    s_add_u32 s{sT1}, s{sT1}, {WS_EB}
    v_add_u32 v30, s{sT1}, v30
    v_cmp_lt_u32 vcc, 31, v0
    v_add_u32 v29, {WS_FL - 32*128}, v3
    s_nop 0
    v_cndmask_b32 v30, v30, v29, vcc
L_tv:
    v_lshlrev_b32 v1, 2, v0""")
    def chunk_s(self, v, rot):
        self.a(f"s_add_u32 s{sT2}, s{rot}, {v}\ns_and_b32 s{sT2}, s{sT2}, 7")
    def c1_unit(self, u):
        a = self.a; ch, isB = divmod(u, 2); self.cur = ("c1", u)
        base = (C1_B if isB else C1_A)[ch % 2]
        self.chunk_s(ch, sROT)
        def xpart():
            self.m0(base, sM4)
            a(f"s_lshl_b32 s{sT0}, s{sT2}, 7")
            for i in range(4): self.dma((12 if isB else 8)+i, SX, f"s{sT0}", 1024*i)
        def wpart():
            a(f"s_lshl_b32 s{sT0}, s{sT2}, 16")
            self.m0(base + 16384, sM2 if isB else sM4)
            if isB: a(f"s_add_u32 s{sT0}, s{sT0}, s{sB1}\ns_add_u32 s{sT0}, s{sT0}, 524288")
            else: a(f"s_add_u32 s{sT0}, s{sT0}, s{sA1}")
            for i in range(2 if isB else 4): self.dma(16+i, SW1, f"s{sT0}", 1024*i)
        if isB: wpart(); xpart()
        else: xpart(); wpart()
    def w2_unit(self, v, pre=False):
        a = self.a; self.cur = ("w2p" if pre else "w2", v)
        self.chunk_s(v, sROT2)
        a(f"s_lshl_b32 s{sT0}, s{sT2}, 16\ns_add_u32 s{sT0}, s{sT0}, s{sB1}")
        for tap in range(3):
            self.m0(C2_W[v] + tap*8192, sM2)
            a(f"s_add_u32 s{sT0}, s{sT0}, 524288" if tap else "s_nop 0")
            for i in range(2): self.dma(21+i, SW2, f"s{sT0}", 1024*i)
    def h_unit(self, v):
        a = self.a; self.cur = ("h", v)
        self.chunk_s(v, sROT2)
        self.m0(C2_H[v], sM4)
        a(f"s_lshl_b32 s{sT0}, s{sT2}, 14")
        for i in range(4): self.dma(20, SWS, f"s{sT0}", 1024*i, "sc1")
    def wf_unit(self, c, paced):
        a = self.a; self.cur = ("wf" if paced else "wfn", c)
        self.chunk_s(c, sROT2)
        self.m0(WF_AT[c], sM2)
        a(f"s_lshl_b32 s{sT0}, s{sT2}, 16\ns_add_u32 s{sT0}, s{sT0}, s{sB1}")
        for i in range(2): self.dma(25+i, SWF, f"s{sT0}", 1024*i)
    def f_unit(self, c, part):
        a = self.a; self.cur = ("f", c, part)
        self.chunk_s(c, sROT2)
        self.m0(F_AT[c], sFO)
        a(f"s_lshl_b32 s{sT0}, s{sT2}, 13\ns_add_u32 s{sT0}, s{sT0}, {WS_F}")
        self.dma(24, SWS, f"s{sT0}", 2048*part, "sc1")

    def loader(self):
        a = self.a
        self.loader_setup()
        for u in range(2): self.c1_unit(u)
        self.srd_rest()
        self.loader_setup2()
        for u in range(2, 4): self.c1_unit(u)
        nxt = 4
        for u in range(16):
            self.wait_unit(("c1", u)); a("s_barrier")
            self.stamp("l", f"c1u{u}" if u in (0, 15) else f"xc1u{u}")
            if u == 11: a(f"buffer_load_dword v2, v1, {srd(SDBG)}, 0 offen sc1"); self.q.append(("pub", 0))
            if u == 13: self.pubcheck(2, 1, first_wait=False)
            while nxt <= min(u + (3 if u < 10 else 2), 15): self.c1_unit(nxt); nxt += 1
            if u == 14:
                a(f"s_cmp_eq_u32 s{sLW}, 3\ns_cselect_b32 exec_hi, 0x3f, -1\nbuffer_load_dword v31, v30, {srd(SWS)}, 0 offen sc1\ns_mov_b64 exec, -1")
                self.q.append(("touch", 0))
        for v in range(4): self.w2_unit(v, True)
        self.wait_unit(("w2p", 2)); a("s_barrier")
        self.poll(28, FL_H); self.q = []
        self.stamp("l", "sync1")
        self.h_unit(1); self.h_unit(2)
        nwt = 0
        def wt(n, pace):
            nonlocal nwt
            while nwt < n:
                if pace and len(self.q) > pace: a(f"s_waitcnt vmcnt({pace})")
                for ins in self.wt_load(nwt): a(ins)
                self.q.append(("wt", nwt)); nwt += 1
        for v in range(1, 8):
            self.wait_unit(("h", v), ("w2", v)); a("s_barrier")
            self.stamp("l", {1: "c2v0", 7: "c2v7"}.get(v, f"xc2v{v}"))
            if v < 6:
                for it in self.c2plan[v-1].split(): (self.h_unit if it[0] == "h" else self.w2_unit)(int(it[1]))
            if v == 3: self.joint_setup()
            if v == 6:
                a(self.slice_s(sROT2, 2, 0))
                for c in range(3): self.wf_unit(c, False)
            if v == 7:
                for c in range(3, 8): self.wf_unit(c, True)
        wt(self.wt_w2, self.pace)
        self.wait_unit(("wf", 7)); a("s_barrier")
        self.poll(28, FL_FA); self.q = []
        self.stamp("l", "sync2")
        b0, b1 = self.abars
        for c in range(1, b1): self.f_unit(c, 0)
        a(self.flag_load(28, FL_FB)); self.q.append(("fb", 0))
        for c in range(b1, 8): self.f_unit(c, 0)
        self.wait_unit(("fb", 0)); a("s_barrier")
        self.stamp("l", "xfb0")
        a(f"v_cmp_eq_u32 vcc, {1 if self.forcerare else 0}, v4\ns_cbranch_vccnz L_fb_late")
        for c in range(1, 8): self.f_unit(c, 1)
        self.wait_unit(("f", 7, 0)); a("s_barrier\nL_fb_join:")
        main = self.a; self.a = Asm(); self.a.nlab = 9000; q = self.q
        self.a("L_fb_late:\ns_waitcnt vmcnt(0)\ns_barrier")
        self.poll(28, FL_FB)
        for c in range(1, 8): self.f_unit(c, 1)
        self.a("s_branch L_fb_join")
        self.stubs += self.a.lines; self.a = main; self.q = q[:-7]
        wt(self.wt_w2 + self.wt_early, 0)
        self.wait_unit(("f", 7, 1)); a("s_barrier")
        self.stamp("l", "xfb2")
        self.poll(28, FL_GE)
        a(f"v_lshlrev_b32 v29, 4, v0\ns_add_u32 m0, s{sM4}, {EB_AT}\ns_add_u32 s{sT0}, s{sM4}, {WS_EB}")
        self.q = []; self.cur = ("eb", 0)
        for i in range(4): self.dma(29, SWS, f"s{sT0}", 1024*i, "sc1")
        wt(min(32, self.wt_w2 + self.wt_early + self.wt_l2), self.pace3)
        self.stamp("l", "xwti")
        self.nwt_l = nwt
        self.n_after_eb = len(self.q) - 4

    FER = [8, 10, 24, 26]
    def joint_setup(self):
        self.a(f"""v_mov_b32 v15, v2
    v_and_b32 v1, 31, v0
    v_mul_u32_u24 v1, 1040, v1
    v_lshrrev_b32 v2, 5, v0
    v_lshl_add_u32 v1, v2, 4, v1             ; A read
    s_and_b32 s{sT2}, s{sJ}, 1
    s_lshl_b32 s{sT0}, s{sT2}, 3
    s_add_u32 s{sT0}, s{sT0}, s{sW}
    s_lshl_b32 s{sT0}, s{sT0}, 15
    v_lshlrev_b32 v12, 4, v0
    v_add_u32 v12, s{sT0}, v12
    s_lshl_b32 s{sT2}, s{sT2}, 9
    v_mov_b32 v11, 8320
    v_lshrrev_b32 v8, 4, v0
    v_and_b32 v9, 15, v0
    s_lshl_b32 s{sT0}, s{sW}, 7
    v_lshl_add_u32 v10, v9, 3, s{sT0}
    s_lshl_b32 s{sT1}, s{sW}, 11
    v_lshl_add_u32 v13, v9, 4, s{sT1}
    s_lshl_b32 s{sWR}, s{sKC}, 2
    s_lshr_b32 s{sT1}, s{sJ}, 1              ; pair
    s_add_u32 s{sWR}, s{sWR}, s{sT1}
    s_and_b32 s{sWR}, s{sWR}, 14
    s_lshl_b32 s{sT3}, s{sWR}, 6
    v_subrev_u32 v2, s{sT3}, v10
    v_and_b32 v2, 1023, v2
    v_mad_u32_u24 v2, v8, v11, v2            ; A write
    s_lshl_b32 s{sT3}, s{sT1}, 9
    s_lshl_b32 s{sT0}, s{sW}, 14
    s_add_u32 s{sT3}, s{sT3}, s{sT0}
    v_lshlrev_b32 v3, 3, v9
    v_lshl_add_u32 v3, v8, 7, v3
    v_add_u32 v3, s{sT3}, v3
    v_lshlrev_b32 v5, 10, v9
    v_lshl_add_u32 v5, v8, 4, v5
    s_lshl_b32 s{sT1}, s{sT1}, 15
    s_add_u32 s{sT1}, s{sT1}, s{sT2}
    s_lshl_b32 s{sT2}, s{sW}, 6
    s_add_u32 s{sT1}, s{sT1}, s{sT2}
    v_add_u32 v5, s{sT1}, v5
    s_lshl_b32 s{sWR}, s{sWR}, 11
    v_lshlrev_b32 v7, 2, v0
    v_add_u32 v7, {WS_FL}, v7
    v_and_b32 v28, 31, v0
    v_lshlrev_b32 v28, 2, v28
    v_add_u32 v28, {WS_FL}, v28""")
    def wt_load(self, i):
        return [f"buffer_load_dwordx4 a[{4*i}:{4*i+3}], v12, {srd(SWT)}, s{sWR} offen offset:{(i % 4)*1024} sc1"] + \
               ([f"s_add_u32 s{sWR}, s{sWR}, 4096", f"s_and_b32 s{sWR}, s{sWR}, 0x7fff"] if i % 4 == 3 else [])
    def fe_load(self, ps):
        return f"s_add_u32 s{sT2}, s{sFE}, {PASS_ROW[ps]*128}\nbuffer_load_dwordx2 v[{self.FER[ps]}:{self.FER[ps]+1}], v3, {srd(SWS)}, s{sT2} offen sc1"
    def tanh_ops(self, ps, form):
        p = lambda r: f"v[{r}:{r+1}]"
        f0, f1 = self.FER[ps], self.FER[ps]+1
        o = [f"v_lshlrev_b32 v112, 16, v{f0}", f"v_and_b32 v113, 0xffff0000, v{f0}",
             f"v_lshlrev_b32 v114, 16, v{f1}", f"v_and_b32 v115, 0xffff0000, v{f1}"]
        o += [f"v_mul_f32 v{112+i}, s{sTC}, v{112+i}" for i in range(4)]
        if form != "slow": o += [f"v_exp_f32 v{112+i}, v{112+i}" for i in range(4)]
        for u in range(8):
            t = (116, 20)[u % 2]; e = 80 + 4*u; d = 16 + 2*(u % 2)
            if form == "slow":
                o += [f"v_add_f32 v{t+i}, v{112+i}, v{e+i}" for i in range(4)]
                o += [f"v_exp_f32 v{t+i}, v{t+i}" for i in range(4)]
                o += [f"v_add_f32 v{t+i}, 1.0, v{t+i}" for i in range(4)]
            elif form == "pk": o += [f"v_pk_fma_f32 {p(t+i)}, {p(112+i)}, {p(e+i)}, 1.0 op_sel_hi:[1,1,0]" for i in (0, 2)]
            else: o += [f"v_fma_f32 v{t+i}, v{112+i}, v{e+i}, 1.0" for i in range(4)]
            o += [f"v_rcp_f32 v{t+i}, v{t+i}" for i in range(4)]
            if form == "pk": o += [f"v_pk_fma_f32 {p(t+i)}, {p(t+i)}, -2.0, 1.0 op_sel_hi:[1,0,0]" for i in (0, 2)]
            else: o += [f"v_fma_f32 v{t+i}, v{t+i}, -2.0, 1.0" for i in range(4)]
            o += [f"v_cvt_pk_bf16_f32 v{d}, v{t}, v{t+1}", f"v_cvt_pk_bf16_f32 v{d+1}, v{t+2}, v{t+3}"]
            o += [f"ds_write_b64 v2, v[{d}:{d+1}] offset:{JA[ps % 2] + u*1040}"]
        return o
    def out_ops(self, ps):
        acc = 32 + 16*(ps % 2); o0 = PASS_ROW[ps]*8192
        o = [f"v_cvt_pk_bf16_f32 v{120+i}, v{acc+2*i}, v{acc+2*i+1}" for i in range(8)]
        o += [f"v_permlane16_swap_b32 v{120+i}, v{124+i}" for i in range(4)]
        o += [f"s_mov_b32 s{sT0}, {o0}", f"buffer_store_dwordx4 v[120:123], v5, {srd(SOUT)}, s{sT0} offen sc1",
              f"s_mov_b32 s{sT1}, {o0+16384}", f"buffer_store_dwordx4 v[124:127], v5, {srd(SOUT)}, s{sT1} offen sc1"]
        return o
    def jpass(self, ps, form, wt_from=32):
        a = self.a; acc = 32 + 16*(ps % 2); R = 3
        ring = lambda s: 64 + 4*(s % 4)
        rd = lambda s: f"ds_read_b128 v[{ring(s)}:{ring(s)+3}], v1 offset:{JA[ps % 2] + 32*s}"
        out = self.out_ops(ps-1) if ps else []
        tan = self.tanh_ops(ps+1, form) if ps < 3 else []
        start = {i: 2 for i in range(8)} if ps else {}
        if ps == 1: start.update({len(out)+i: self.t2_at for i in range(4)})
        gaps = sched.schedule(out + tan, 32, self.budget + (12 if form == "slow" else 0), start=start)
        q = []; issued = wt_from; waited = -1; nst = 0; few = ps != 1
        for s in range(R): a(rd(s)); q.append(("r", s))
        for s in range(32):
            n = len(q) - 1 - q.index(("r", s))
            vm = ""
            if wt_from < 32 and waited < s and s <= self.chk_at[1]:
                assert issued > s
                upto = min(s + 1, issued - 1) if s % 2 == 0 else s
                vm = f"vmcnt({issued - 1 - upto + (s >= self.chk_at[0])}) "; waited = upto
            a(f"s_waitcnt {vm}lgkmcnt({n})")
            a(f"v_mfma_f32_32x32x16_bf16 v[{acc}:{acc+15}], a[{4*s}:{4*s+3}], v[{ring(s)}:{ring(s)+3}], {'0' if s == 0 else f'v[{acc}:{acc+15}]'}")
            if s + R < 32: a(rd(s+R)); q.append(("r", s+R))
            for ins in gaps[s]:
                if not few and ins in tan[:4]: a(f"s_waitcnt vmcnt({nst})"); few = True
                a(ins)
                if ins.startswith("ds_"): q.append(("w", 0))
                if ins.startswith("buffer_store"): nst += 1
            while issued < 32 and (issued - wt_from) * self.chk_at[0] < (s + 1) * (32 - wt_from):
                for ins in self.wt_load(issued): a(ins)
                issued += 1
            if ps == 0 and s == self.chk_at[0] - 1:
                assert issued == 32
                a(self.flag_load(28, FL_FEB))
            if ps == 0 and s == self.chk_at[1]:
                L = a.label("L_fl"); D = a.label("L_fd")
                a(f"s_waitcnt vmcnt(0)\nv_cmp_eq_u32 vcc, {1 if self.forcerare else 0}, v4\ns_cbranch_vccnz {L}\n{D}:")
                a(f"v_cmp_lt_u32 vcc, 1, v4\ns_cmp_lg_u64 vcc, 0\ns_cselect_b32 s{sSLOWT}, 1, {1 if self.forceslowt == 2 else 0}")
                a(self.fe_load(2)); a(self.fe_load(3))
                main = self.a; self.a = Asm(); self.a.nlab = main.nlab + 5000
                self.a(f"{L}:"); self.poll(28, FL_FEB); self.a(f"s_branch {D}")
                self.stubs += self.a.lines; self.a = main
        a("s_waitcnt lgkmcnt(0)")
    def flat(self, ops):
        return [i for g in sched.schedule(ops, 1, 0) for i in g]
    def bb_loads(self):
        self.a("s_waitcnt lgkmcnt(0)")
        for u in range(8):
            self.a(f"s_mov_b32 s{sT0}, {WS_BB + u*256}\nbuffer_load_dwordx4 v[{80+4*u}:{83+4*u}], v13, {srd(SWS)}, s{sT0} offen sc1")
        self.a("s_waitcnt vmcnt(0)")
    def joint(self):
        a = self.a
        for role in "cl":
            a(f"L_joint_{role}:\nv_mov_b32 v30, {lS1}")
            if role == "c":
                L = a.label("L_np"); a(f"s_cmp_lg_u32 s{sW}, 0\ns_cbranch_scc1 {L}")
                self.poll(7, FL_FEA)
                a(f"v_cmp_lt_u32 vcc, 1, v4\ns_cmp_lg_u64 vcc, 0\ns_cselect_b32 s{sT0}, 1, {1 if self.forceslowt == 1 else 0}\nv_mov_b32 v4, s{sT0}\nds_write_b32 v30, v4\ns_waitcnt lgkmcnt(0)\n{L}:")
            else: a(f"s_waitcnt vmcnt({self.n_after_eb})")
            self.stamp(role, "sync3")
            a("s_barrier")
            a(self.fe_load(0)); a(f"ds_read_b32 v4, v30\nv_add_u32 v14, {EB_AT}, v13")
            for u in range(8): a(f"ds_read_b128 v[{80+4*u}:{83+4*u}], v14 offset:{u*256}")
            a(f"s_waitcnt lgkmcnt(8)\nv_readfirstlane_b32 s{sSLOWT}, v4\ns_waitcnt vmcnt(0)")
            if role == "c": self.set_flag(FL_FEB, val=29, addr=15)
            a(self.fe_load(1))
            a(f"s_cmp_lg_u32 s{sSLOWT}, 0\ns_cbranch_scc1 L_jslow_{role}\ns_waitcnt lgkmcnt(0)")
            self.stamp(role, "jpre")
            ops = self.flat(self.tanh_ops(0, "pk"))
            nwt, n0 = (0, self.wt_t0) if role == "c" else (self.nwt_l, min(self.wt_t0l, 32 - self.nwt_l))
            for i, ins in enumerate(ops):
                a(ins)
                if n0 and (i+1)*n0//len(ops) > i*n0//len(ops):
                    for l in self.wt_load(nwt): a(l)
                    nwt += 1
            a(f"s_waitcnt vmcnt({n0}) lgkmcnt(0)\ns_barrier")
            self.stamp(role, "t0")
            self.jpass(0, "fast", nwt)
            a(f"s_cmp_lg_u32 s{sSLOWT}, 0\ns_cbranch_scc1 L_jslow_b\ns_barrier")
            self.stamp(role, "p0")
            if role == "c": a("s_branch L_p1")
        a("L_p1:")
        for ps in range(1, 4):
            if ps == 2:
                L = a.label("L_nwb")
                a(f"s_or_b32 s{sT0}, s{sJ}, s{sW}\ns_or_b32 s{sT0}, s{sT0}, s{sKC}\ns_cbranch_scc1 {L}\ns_cmp_eq_u32 s{sFAST}, 0\ns_cbranch_scc1 {L}\nbuffer_wbl2 sc1\n{L}:")
            self.jpass(ps, "fast")
            if ps < 3: a("s_barrier")
            self.stamp("j", f"xp{ps}")
        a("s_nop 7\ns_nop 3")
        for ins in self.flat(self.out_ops(3)): a(ins)
        a("s_branch L_fin" if self.stamps else "s_endpgm")
        a("L_jslow_b:")
        self.bb_loads()
        a("s_barrier\ns_branch L_jslow_p1")
        a("L_jslow_c:")
        for i in range(32):
            if i == self.nwt_l: a("L_jslow_l:")
            for ins in self.wt_load(i): a(ins)
        assert self.nwt_l < 32 and self.nwt_l % 4 == self.nwt_l % 4
        self.bb_loads()
        for ins in self.flat(self.tanh_ops(0, "slow")): a(ins)
        a("s_waitcnt lgkmcnt(0)\ns_barrier")
        for ps in range(4):
            if ps == 1: a("L_jslow_p1:")
            self.jpass(ps, "slow")
            if ps < 3: a("s_barrier")
        a("s_nop 7\ns_nop 3")
        for ins in self.flat(self.out_ops(3)): a(ins)
        a("s_branch L_fin" if self.stamps else "s_endpgm")
        for l in self.stubs: a(l)
        a("L_fin:")
        self.stamp("j", "jend")

    def finish(self):
        a = self.a
        if self.stamps:
            a("s_waitcnt vmcnt(0)")
            self.stamp("j", "drain")
            a("s_waitcnt lgkmcnt(0)")
            if self.probe is not None:
                n0, n1, K = self.probe
                i0, i1, ie = (self.names["l"].index(n) for n in (n0, n1, "drain"))
                a(f"""s_cmp_lt_u32 s{sW}, 4
    s_cbranch_scc1 L_end
    s_sub_u32 s{sT0}, s{STAMP0+2*i1}, s{STAMP0+2*i0}
    s_mul_i32 s{sT0}, s{sT0}, {K}
    s_min_u32 s{sT0}, s{sT0}, 100000
L_spin:
    s_memrealtime s[52:53]
    s_waitcnt lgkmcnt(0)
    s_sub_u32 s52, s52, s{STAMP0+2*ie}
    s_cmp_lt_u32 s52, s{sT0}
    s_cbranch_scc1 L_spin""")
            else:
                for i in range(13): a(f"v_mov_b32 v{16+i}, s{STAMP0+2*i}")
                a(f"""s_lshl_b32 s{sT0}, s{sJ}, 3
    s_add_u32 s{sT0}, s{sT0}, s{sW}
    s_lshl_b32 s{sT0}, s{sT0}, 6
    s_add_u32 s{sT0}, s{sT0}, {WS_STAMP}
    v_mov_b32 v1, s{sT0}
    s_mov_b64 exec, 1""")
                for i in range(4): a(f"buffer_store_dwordx4 v[{16+4*i}:{19+4*i}], v1, {srd(SWS)}, 0 offen offset:{16*i}")
        a("L_end:\ns_endpgm")

    def build(self):
        a = self.a
        a(header([(None, 256, 512, 163840)]))
        a(kernel_begin(KN))
        self.prologue()
        self.loader()
        a("s_branch L_joint_l")
        self.compute_setup()
        self.conv1(); self.conv2(); self.ge_fe()
        n = max(self.nst.values())
        for r in "cl":
            while len(self.names[r]) < n: self.names[r].append("-")
            self.nst[r] = n
        self.joint()
        self.finish()
        a(descriptor(KN, 256, 128))
        return self.a.text()

if __name__ == "__main__":
    out = sys.argv[1] if len(sys.argv) > 1 else "k12.s"
    g = Gen(stamps=("stamps" in sys.argv))
    open(out, "w").write(g.build())
    print(g.names)
```

```python
import sys, struct
from asmlib import *
import sched
KN = "standalone__seq2seq_rnn_t_joint__speech_kernel"

def fbits(x):
    return "0x%08x" % struct.unpack("<I", struct.pack("<f", x))[0]

LOG2E = 1.4426950408889634
GC0 = -2.0 * LOG2E * 0.7978845608028654
GC1 = GC0 * 0.044715
TC = 2.0 * LOG2E

WS_H, WS_F, WS_EB, WS_BB, WS_FL, WS_STAMP, WS_FE = 0, 0x20000, 0x40000, 0x44000, 0x48000, 0x4c000, 0x50000
FL_H, FL_FA, FL_FEA, FL_GE, FL_FB, FL_FEB = range(6)
GP_AT = 0x80000
SX, SW1, SW2, SWF, SWG, SWO, SG, SOUT, SWS, SDBG, SWT = 8, 12, 16, 20, 24, 28, 32, 36, 40, 44, 92
def srd(b): return f"s[{b}:{b+3}]"
sW, sJ, sKC, sC, sQ, sB, sLW, sROT = 4, 5, 6, 7, 48, 49, 50, 51
sT0, sT1, sT2, sT3 = 3, 52, 53, 54
sA1, sB1, sCNT, sZM = 55, 56, 57, 58
sGC1, sWR, sTC, sFAST = 60, 61, 62, 63
STAMP0 = 64
sM2, sM4, sFE, sROT2, sSLOWT, sFO = 97, 98, 99, 100, 101, 96
CODE_LINES = 11
C1_A = [0, 57344]; C1_B = [32768, 90112]
lC, lD, lE, lP, lQ, lS, lA, lS1, lB = 0, 24576, 49152, 73728, 90112, 106496, 114688, 122880, 139264
PREP_AT = lA
C2_W = [lA, lB, lC, lD, lB, lC, lE, lD]
C2_H = [lP, lQ, lE, lS, lS1, lP, lQ, lS]
WF_AT = [lB, lB+8192, lB+16384, lS1, lS1+8192, lC, lC+8192, lC+16384]
F_AT = [lP, lD, lD+8192, lD+16384, lE, lE+8192, lE+16384, lQ]
EB_AT = lS
MID = 49152
JA = [0, 33280]
PASS_ROW = [0, 32, 16, 48]

HEADER = """; Kernarg (80 bytes, pointers only): x w1 w2 g w_f w_g w_o | d_out | d_debug | d_ws
;
"""

class Gen:
    def __init__(self, stamps=False, clk="s_memrealtime", only=None, probe=None, forceslow=False, forceslowt=False, forcerare=False,
                 budget=26, pace=5, pace3=4, wt_w2=10, wt_early=4, wt_l2=4, wt_t0=14, jd2=7, jd3=2, flag_at=5, chk_at=(22, 28), t2_at=3,
                 abars=(1, 4), fra=2, wt_t0l=6, yearly=True, js_at=3, c1ra=2, c1rw=(2, 2), c2rw=(2, 2), c2ra=2, lasw=10, ptu=14, c1hard=(), mallpf=1, s3rest=1, c2plan=("h3 w4", "h4 w5", "h5", "h6 w6", "h7 w7")):
        self.__dict__.update(locals()); del self.__dict__["self"]
        self.early = []; self.stubs = []; self.a = Asm(); self.nst = {"c": 1, "l": 1}; self.names = {"c": ["setup"], "l": ["setup"]}
    def stamp(self, role, name):
        if not self.stamps: return
        if self.only and name not in self.only and name != "drain": return
        if not self.only and name.startswith("x"): return
        if role == "j":
            n = max(self.nst.values())
            for r in "cl":
                while len(self.names[r]) < n: self.names[r].append("-")
                self.names[r].append(name); self.nst[r] = n+1
            i = n
        else:
            i = self.nst[role]; self.nst[role] += 1; self.names[role].append(name)
        assert i < 13
        self.a(f"{self.clk} s[{STAMP0+2*i}:{STAMP0+2*i+1}]")

    def stamp2(self, n):
        if self.stamps and self.only and n in self.only:
            self.a(f"{self.clk} s[{84+2*len(self.early)}:{85+2*len(self.early)}]"); self.early.append(n)
    def prologue(self):
        self.a(f"""
    s_cmp_ge_u32 s2, 256
    s_cbranch_scc1 L_end
    {self.clk + " s[90:91]" if self.stamps else ""}
    s_load_dwordx16 s[64:79], s[0:1], 0      ; x w1 w2 g w_f w_g w_o out
    s_load_dwordx4 s[80:83], s[0:1], 64
    v_lshrrev_b32 v1, 6, v0
    v_and_b32 v0, 63, v0                     ; v0 = lane
    v_readfirstlane_b32 s{sW}, v1
    s_and_b32 s{sT0}, s2, 7
    s_lshr_b32 s{sT1}, s2, 3
    s_and_b32 s{sJ}, s{sT1}, 7               ; member
    s_lshr_b32 s{sKC}, s{sT1}, 3
    s_lshl_b32 s{sC}, s{sT0}, 2
    s_add_u32 s{sC}, s{sC}, s{sKC}
    s_lshr_b32 s{sB}, s{sC}, 4
    s_and_b32 s{sQ}, s{sC}, 15
    s_and_b32 s{sROT}, s{sJ}, 6
    s_add_u32 s{sROT}, s{sROT}, s{sT0}
L_pc:
    s_cmp_lt_u32 s{sW}, 4
    s_cbranch_scc1 L_compute""")
    def srd_first(self):
        self.a(f"""s_waitcnt lgkmcnt(0)
    s_mul_i32 s{sT0}, s{sB}, 4096000
    s_add_u32 s{SX}, s64, s{sT0}
    s_addc_u32 s{SX+1}, s65, 0
    s_mov_b32 s{SX+2}, 4096000
    s_mov_b32 s{SX+3}, 0x20000
    s_mov_b32 s{SW1}, s66
    s_mov_b32 s{SW1+1}, s67
    s_mov_b32 s{SW1+2}, 1572864
    s_mov_b32 s{SW1+3}, 0x20000""")
    def srd_rest(self):
        a = self.a
        for r, src, n in [(SW2, 68, 1572864), (SWF, 72, 524288), (SWG, 74, 524288), (SWO, 76, 524288), (SG, 70, 16384), (SDBG, 80, 256)]:
            a(f"s_mov_b32 s{r}, s{src}\ns_mov_b32 s{r+1}, s{src+1}\ns_mov_b32 s{r+2}, {n}\ns_mov_b32 s{r+3}, 0x20000")
        a(f"""s_mul_i32 s{sT0}, s{sB}, 1000
    s_mul_i32 s{sT1}, s{sQ}, 63
    s_add_u32 s{sT0}, s{sT0}, s{sT1}
    s_lshl_b32 s{sT0}, s{sT0}, 13
    s_add_u32 s{SOUT}, s78, s{sT0}
    s_addc_u32 s{SOUT+1}, s79, 0
    s_mov_b32 s{SOUT+2}, {63*8192}
    s_cmp_eq_u32 s{sQ}, 15
    s_cselect_b32 s{SOUT+2}, {55*8192}, s{SOUT+2}
    s_mov_b32 s{SOUT+3}, 0x20000
    s_lshl_b32 s{sT0}, s{sC}, 19
    s_add_u32 s{SWS}, s82, s{sT0}
    s_addc_u32 s{SWS+1}, s83, 0
    s_mov_b32 s{SWS+2}, 0x80000
    s_mov_b32 s{SWS+3}, 0x20000
    s_add_u32 s{SWT}, s82, 0x1000000
    s_addc_u32 s{SWT+1}, s83, 0
    s_mov_b32 s{SWT+2}, 0xc0000
    s_mov_b32 s{SWT+3}, 0x20000
    s_mov_b32 s{sROT2}, s{sJ}
    s_mov_b32 s{sGC1}, {fbits(GC1)}
    s_mov_b32 s{sGC1+1}, {fbits(GC1)}
    s_mov_b32 s{sTC}, {fbits(TC)}""")
        if self.stamps: a(f"s_mov_b32 s{STAMP0}, s90\ns_mov_b32 s{STAMP0+1}, s91")
    def slice_s(self, dst, which, shift):
        o = f"s_sub_u32 s{dst}, s{sJ}, s{sKC}\ns_add_u32 s{dst}, s{dst}, {self.jd2}" if which == 2 else f"s_add_u32 s{dst}, s{sJ}, {self.jd3}"
        return o + f"\ns_and_b32 s{dst}, s{dst}, 7" + (f"\ns_lshl_b32 s{dst}, s{dst}, {shift}" if shift else "")

    def stream16(self, groups, bar_at, drain, RA=3, RW=(3, 2), barhook=None, grouphook=None, hard=()):
        a = self.a
        xbase = lambda i: 64 + 8*(i % (RA+1))
        wslot = {}; todo = {}
        for i, g in enumerate(groups):
            if g["w"] and g["w"][0] not in wslot:
                b = 96 + 8*(len(wslot) % 3); wslot[g["w"][0]] = b
                for nt, (breg, off) in enumerate(g["w"][1]):
                    for e in range(2):
                        todo.setdefault(i - RW[nt], []).append((i, ("w", g["w"][0]), f"ds_read_b64_tr_b16 v[{b+4*nt+2*e}:{b+4*nt+2*e+1}], v{breg} offset:{off + 512*e}"))
            for xi, (areg, off) in enumerate(g["x"]):
                todo.setdefault(i - RA, []).append((i, ("x", i, xi), f"ds_read_b128 v[{xbase(i)+4*xi}:{xbase(i)+4*xi+3}], v{areg} offset:{off}"))
        q = []; bars = sorted(bar_at); done = set(); issued = []
        for u in hard:
            b = bars[u]
            for at in sorted(k for k in todo if isinstance(k, int) and k < b):
                mv = [it for it in todo[at] if it[0] >= b]; todo[at] = [it for it in todo[at] if it[0] < b]
                todo.setdefault(("pre", b), []).extend(mv)
        def issue(item):
            u = max((b for b in bars if b <= item[0]), default=None)
            if u is not None and u not in done:
                assert all(b in done for b in bars if b < u)
                assert not any(it[0] < u for lst in todo.values() for it in lst if it not in issued)
                done.add(u)
                if drain and u > 0: a("s_waitcnt lgkmcnt(0)")
                a("s_barrier")
                if barhook: barhook(bars.index(u))
            a(item[2]); q.append(item[1]); issued.append(item)
        for at in sorted(k for k in todo if isinstance(k, int) and k < 0):
            for item in sorted(todo[at], key=lambda t: t[0]): issue(item)
        for i, g in enumerate(groups):
            rd = sorted(todo.get(i, []), key=lambda t: t[0]); k = 0; plast = -1
            for item in todo.get(("pre", i), []): issue(item)
            if grouphook: grouphook(i)
            for m, (d, w, xi, first) in enumerate(g["mf"]):
                need = [("x", i, xi)] + ([("w", g["w"][0])] if g["w"] else [])
                last = max(j for j, t in enumerate(q) if t in need)
                if last > plast:
                    assert len(q) - 1 - last <= 15
                    a(f"s_waitcnt lgkmcnt({len(q) - 1 - last})"); plast = last
                if g["w"]: w = f"v[{wslot[g['w'][0]]+4*w}:{wslot[g['w'][0]]+4*w+3}]"
                x = xbase(i) + 4*xi
                a(f"v_mfma_f32_16x16x32_bf16 v[{d}:{d+3}], {w}, v[{x}:{x+3}], {'0' if first else f'v[{d}:{d+3}]'}")
                k2 = (len(rd)*(m+1) + 3)//4
                for item in rd[k:k2]: issue(item)
                k = k2

    def gelu_pack(self, acc, n, out):
        a = self.a; p = lambda r: f"v[{r}:{r+1}]"
        R = [acc+2*i for i in range(n//2)]; T = [96+2*i for i in range(n//2)]
        for r, t in zip(R, T): a(f"v_pk_mul_f32 {p(t)}, {p(r)}, {p(r)}")
        for r, t in zip(R, T): a(f"v_pk_fma_f32 {p(t)}, {p(t)}, s[{sGC1}:{sGC1+1}], v[24:25]")
        for r, t in zip(R, T): a(f"v_pk_mul_f32 {p(t)}, {p(t)}, {p(r)}")
        for i in range(n): a(f"v_exp_f32 v{96+i}, v{96+i}")
        for r, t in zip(R, T): a(f"v_pk_add_f32 {p(t)}, {p(t)}, 1.0 op_sel_hi:[1,0]")
        for i in range(n): a(f"v_rcp_f32 v{96+i}, v{96+i}")
        for r, t in zip(R, T): a(f"v_pk_mul_f32 {p(t)}, {p(t)}, {p(r)}")
        for i, t in enumerate(T): a(f"v_cvt_pk_bf16_f32 v{out+i}, v{t}, v{t+1}")
    def swap(self, out, nq):
        self.a("s_nop 1")
        for k in range(nq):
            for i in range(2): self.a(f"v_permlane16_swap_b32 v{out+4*k+i}, v{out+4*k+2+i}")
    def xstore(self, lines):
        a = self.a; S = a.label("L_xs"); D = a.label("L_xd")
        a(f"s_cmp_eq_u32 s{sFAST}, 0\ns_cbranch_scc1 {S}")
        for l in lines: a(l)
        a(f"{D}:")
        self.stubs += [f"{S}:"] + [l + " sc1" for l in lines] + [f"s_branch {D}"]
    def tile_store(self, base, voff, pk, steps):
        a = self.a
        a(f"s_lshr_b32 s{sT1}, s{sW}, 1\ns_lshl_b32 s{sT1}, s{sT1}, 12\ns_add_u32 s{sT1}, s{sT1}, {base}")
        self.xstore([f"buffer_store_dwordx4 v[{pk+4*i}:{pk+4*i+3}], v{voff}, {srd(SWS)}, s{sT1} offen offset:{st}" for i, st in enumerate(steps)])
    def set_flag(self, line, val=3, addr=2, younger=0):
        a = self.a
        a(f"s_waitcnt vmcnt({younger})\ns_mov_b64 exec, 1")
        self.xstore([f"buffer_store_dword v{val}, v{addr}, {srd(SWS)}, 0 offen offset:{line*128}"])
        a("s_mov_b64 exec, -1")
    def range_flag(self, dst, regs):
        a = self.a
        a(f"v_max3_f32 v{dst}, abs(v{regs[0]}), abs(v{regs[1]}), abs(v{regs[2]})")
        for i in range(3, len(regs)-1, 2): a(f"v_max3_f32 v{dst}, abs(v{regs[i]}), abs(v{regs[i+1]}), v{dst}")
        a(f"v_max_f32 v{dst}, abs(v{regs[-1]}), v{dst}\nv_cmp_lt_f32 vcc, 0x421c0000, v{dst}\ns_cmp_lg_u64 vcc, 0\ns_cselect_b32 s{sT0}, 3, 1\nv_mov_b32 v{dst}, s{sT0}")
    def flag_load(self, voff, line):
        return f"buffer_load_dword v4, v{voff}, {srd(SWS)}, 0 offen offset:{line*128} sc1"
    def poll(self, voff, line):
        a = self.a; L = a.label("L_poll"); D = a.label("L_got")
        a(f"""s_mov_b32 s{sCNT}, 0
{L}:
    {self.flag_load(voff, line)}
    s_add_u32 s{sCNT}, s{sCNT}, 1
    s_cmp_gt_u32 s{sCNT}, 200000
    s_cbranch_scc1 {D}
    s_waitcnt vmcnt(0)
    v_cmp_eq_u32 vcc, 0, v4
    s_cbranch_vccnz {L}
{D}:
    s_waitcnt vmcnt(0)""")
    def pubcheck(self, vp, vaddr, first_wait=True):
        a = self.a; L = a.label("L_pub"); D = a.label("L_pubd"); E = a.label("L_pube")
        a(f"s_mov_b32 s{sCNT}, 0\ns_lshl_b32 s{sT2}, s{sC}, 1\ns_add_u32 s{sT3}, s{sT2}, 1")
        if not first_wait: a(f"s_branch {E}")
        a(f"""{L}:
    s_waitcnt vmcnt(0)
{E}:
    v_and_b32 v4, 0x80808080, v{vp}
    v_cmp_ne_u32 vcc, 0x80808080, v4
    s_cbranch_vccz {D}
    s_add_u32 s{sCNT}, s{sCNT}, 1
    s_cmp_gt_u32 s{sCNT}, 200000
    s_cbranch_scc1 {D}
    buffer_load_dword v{vp}, v{vaddr}, {srd(SDBG)}, 0 offen sc1
    s_branch {L}
{D}:
    v_readlane_b32 s{sT0}, v{vp}, s{sT2}
    v_readlane_b32 s{sT1}, v{vp}, s{sT3}
    s_and_b32 s{sT2}, s{sT0}, 0xff
    s_mul_i32 s{sT2}, s{sT2}, 0x01010101
    s_xor_b32 s{sT0}, s{sT0}, s{sT2}
    s_xor_b32 s{sT1}, s{sT1}, s{sT2}
    s_or_b32 s{sT0}, s{sT0}, s{sT1}
    s_cmp_eq_u32 s{sT0}, 0
    s_cselect_b32 s{sFAST}, {0 if self.forceslow else 1}, 0
    s_cmp_eq_u32 s{sFAST}, 0
    s_cselect_b32 s{sFE}, {WS_FE}, {WS_H}""")

    def act_addrs(self, dst, rowbase_s, shift, add):
        a = self.a
        a(f"v_and_b32 v26, 15, v0")
        if shift: a(f"v_add_u32 v26, {shift}, v26")
        a(f"""v_and_b32 v27, 6, v26
    v_lshrrev_b32 v30, 4, v0
    v_xor_b32 v27, v27, v30
    v_lshlrev_b32 v27, 4, v27
    v_lshl_add_u32 v27, v26, 7, v27
    v_add_u32 v{dst}, s{rowbase_s}, v27""")
        if add: a(f"v_add_u32 v{dst}, {add}, v{dst}")
        a(f"v_xor_b32 v{dst+1}, 64, v{dst}")
    def compute_setup(self):
        a = self.a
        a("L_compute:")
        self.srd_first(); self.srd_rest()
        a(f"""
    s_lshl_b32 s{sT0}, s{sJ}, 2
    s_add_u32 s{sT0}, s{sT0}, s{sW}
    s_lshl_b32 s{sT0}, s{sT0}, 2
    s_add_u32 s{sT0}, s{sT0}, {WS_FL}
    v_mov_b32 v2, s{sT0}
    v_mov_b32 v3, 1
    s_getreg_b32 s{sT1}, hwreg(HW_REG_XCC_ID, 0, 4)
    s_or_b32 s{sT1}, s{sT1}, 0x80
    v_mov_b32 v120, s{sT1}
    s_lshl_b32 s{sT1}, s{sC}, 3
    s_add_u32 s{sT1}, s{sT1}, s{sJ}
    v_mov_b32 v121, s{sT1}
    s_cmp_lg_u32 s{sW}, 0
    s_cbranch_scc1 L_noclear
    v_lshrrev_b32 v4, 2, v0
    v_lshlrev_b32 v4, 7, v4
    v_and_b32 v5, 3, v0
    v_lshl_add_u32 v4, v5, 2, v4
    v_add_u32 v4, s{sT0}, v4
    v_mov_b32 v5, 0
    s_mov_b64 exec, 0xffffff
    buffer_store_dword v5, v4, {srd(SWS)}, 0 offen sc1
    s_mov_b64 exec, -1
    v_lshrrev_b32 v26, 3, v0
    v_and_b32 v27, 7, v0
    v_bfe_u32 v28, v0, 4, 1
    v_lshlrev_b32 v28, 2, v28
    v_xor_b32 v28, v28, v27
    v_lshlrev_b32 v28, 4, v28
    v_lshl_add_u32 v28, v26, 10, v28
    s_and_b32 s{sT1}, s2, 7
    s_lshl_b32 s{sT1}, s{sT1}, 7
    v_add_u32 v28, s{sT1}, v28
    v_add_u32 v29, 7168, v28
    s_mov_b32 m0, {PREP_AT}
    s_lshr_b32 s{sT1}, s2, 3
    s_lshl_b32 s{sT1}, s{sT1}, 14
    buffer_load_dwordx4 v28, {srd(SWO)}, s{sT1} offen lds
    buffer_load_dwordx4 v29, {srd(SWO)}, s{sT1} offen offset:1024 lds
    s_lshr_b32 s{sT1}, s2, 3
    s_and_b32 s{sT2}, s{sT1}, 3
    s_and_b32 s{sT3}, s2, 7
    s_lshl_b32 s{sT3}, s{sT3}, 2
    s_add_u32 s{sT2}, s{sT2}, s{sT3}
    s_lshr_b32 s{sT1}, s{sT1}, 2
    s_lshl_b32 s{sA1}, s{sT2}, 3
    s_add_u32 s{sA1}, s{sA1}, s{sT1}
    s_lshl_b32 s{sA1}, s{sA1}, 10
    s_add_u32 s{sA1}, s{sA1}, {GP_AT}
    v_lshrrev_b32 v28, 1, v0
    v_and_b32 v29, 1, v0
    v_lshlrev_b32 v29, 4, v29
    v_lshl_add_u32 v28, v28, 10, v29
    v_add_u32 v29, {32768-1024}, v28
    s_mov_b32 m0, {PREP_AT + 2048}
    s_lshl_b32 s{sT3}, s{sT1}, 16
    s_lshl_b32 s{sT2}, s{sT2}, 5
    s_add_u32 s{sT3}, s{sT3}, s{sT2}
    buffer_load_dwordx4 v28, {srd(SWG)}, s{sT3} offen lds
    buffer_load_dwordx4 v29, {srd(SWG)}, s{sT3} offen offset:1024 lds
    v_lshlrev_b32 v27, 4, v27
    v_lshl_add_u32 v28, v26, 10, v27
    v_add_u32 v29, 7168, v28
    s_mov_b32 m0, {PREP_AT + 4096}
    s_lshl_b32 s{sT3}, s{sT1}, 7
    buffer_load_dwordx4 v28, {srd(SG)}, s{sT3} offen lds
    buffer_load_dwordx4 v29, {srd(SG)}, s{sT3} offen offset:1024 lds
L_noclear:
    v_lshlrev_b32 v7, 2, v0
    s_cmp_lg_u32 s{sW}, 1
    s_cbranch_scc1 L_notouch
    s_getpc_b64 s[{sZM}:{sZM+1}]
L_pc0:
    s_sub_u32 s{sZM}, s{sZM}, L_pc0-L_pc
    s_subb_u32 s{sZM+1}, s{sZM+1}, 0
    s_lshr_b32 s{sT1}, s2, 3
    s_mul_i32 s{sT1}, s{sT1}, {CODE_LINES*128}
    v_lshlrev_b32 v26, 7, v0
    v_add_u32 v26, s{sT1}, v26
    v_cmp_gt_u32 vcc, L_end-L_pc, v26
    s_and_b32 vcc_lo, vcc_lo, {(1 << CODE_LINES)-1}
    s_mov_b32 vcc_hi, 0
    v_mov_b32 v27, s{sZM+1}
    s_and_saveexec_b64 s[84:85], vcc
    s_cbranch_execz L_notouch2
    v_add_co_u32 v26, vcc, s{sZM}, v26
    s_nop 1
    v_addc_co_u32 v27, vcc, 0, v27, vcc
    global_load_dword v31, v[26:27], off
L_notouch2:
    s_mov_b64 exec, -1
L_notouch:
    s_and_b32 s{sT0}, s{sW}, 1               ; wn
    s_lshr_b32 s{sT1}, s{sW}, 1              ; wm
    v_lshrrev_b32 v27, 4, v0                 ; g
    v_bfe_u32 v26, v0, 2, 2                  ; r4
    v_lshl_add_u32 v28, v27, 3, v26
    v_lshlrev_b32 v28, 7, v28
    v_lshrrev_b32 v26, 1, v26
    v_and_b32 v29, 1, v27
    v_lshl_add_u32 v26, v29, 1, v26
    s_lshl_b32 s{sT2}, s{sT0}, 1
    v_xor_b32 v26, s{sT2}, v26
    v_lshl_add_u32 v28, v26, 5, v28
    v_and_b32 v26, 3, v0
    v_lshl_add_u32 v16, v26, 3, v28
    v_xor_b32 v17, 32, v16
    v_add_u32 v18, 57344, v16
    v_add_u32 v19, 57344, v17
    v_and_b32 v26, 15, v0
    v_lshrrev_b32 v28, 1, v27
    v_lshl_add_u32 v27, v29, 1, v28
    s_lshl_b32 s{sT2}, s{sT0}, 2
    v_add_u32 v27, s{sT2}, v27
    v_lshrrev_b32 v29, 1, v26
    v_and_b32 v28, 6, v29
    v_xor_b32 v28, v28, v27
    v_lshlrev_b32 v28, 4, v28
    v_lshl_add_u32 v28, v29, 7, v28
    v_and_b32 v30, 1, v26
    v_lshl_add_u32 v28, v30, 13, v28
    s_lshl_b32 s{sT2}, s{sJ}, 14
    v_add_u32 v5, s{sT2}, v28
    v_lshlrev_b32 v28, 4, v27
    v_lshl_add_u32 v28, v26, 7, v28
    {self.slice_s(sT2, 3, 14)}
    v_add_u32 v23, s{sT2}, v28
    v_and_b32 v28, 6, v26
    v_xor_b32 v28, v28, v27
    v_lshlrev_b32 v28, 4, v28
    v_lshl_add_u32 v28, v26, 7, v28
    {self.slice_s(sT2, 2, 13)}
    v_add_u32 v22, s{sT2}, v28
    s_or_b32 s{sT2}, s{sQ}, s{sT1}
    s_cmp_eq_u32 s{sT2}, 0
    s_cselect_b32 s{sZM}, 0x00010001, 0
    s_mov_b32 s{sZM+1}, s{sZM}
    s_lshl_b32 s{sT2}, s{sT1}, 13
    v_mov_b32 v24, {fbits(GC0)}
    v_mov_b32 v25, {fbits(GC0)}""")
        self.act_addrs(8, sT2, 0, 0)
        self.act_addrs(10, sT2, 1, 0)
        for i in range(4): a(f"v_add_u32 v{12+i}, 57344, v{8+i}")
        a(f"""s_cmp_lg_u32 s{sW}, 0
    s_cbranch_scc1 L_noprep
    v_bfe_u32 v26, v0, 2, 2
    v_lshrrev_b32 v27, 5, v0
    v_lshl_add_u32 v27, v27, 3, v26
    v_lshlrev_b32 v27, 7, v27
    v_and_b32 v28, 1, v0
    v_lshlrev_b32 v28, 1, v28
    v_bfe_u32 v29, v0, 4, 1
    v_add_u32 v28, v28, v29
    v_bfe_u32 v29, v0, 3, 1
    v_lshlrev_b32 v29, 2, v29
    v_xor_b32 v28, v28, v29
    v_lshl_add_u32 v27, v28, 4, v27
    v_bfe_u32 v29, v0, 1, 1
    v_lshl_add_u32 v26, v29, 3, v27
    v_add_u32 v26, {PREP_AT}, v26
    v_xor_b32 v27, 64, v26
    s_and_b32 s{sT0}, s2, 7
    s_lshl_b32 s{sT0}, s{sT0}, 16
    s_lshr_b32 s{sT1}, s2, 3
    s_lshl_b32 s{sT1}, s{sT1}, 10
    s_add_u32 s{sT0}, s{sT0}, s{sT1}
    s_add_u32 s{sT1}, s{sT0}, 32768
    v_lshlrev_b32 v30, 4, v0
    v_lshrrev_b32 v28, 4, v0
    v_bfe_u32 v29, v0, 2, 2
    v_lshl_add_u32 v29, v28, 3, v29
    v_lshlrev_b32 v29, 5, v29
    v_and_b32 v31, 3, v0
    v_lshl_add_u32 v29, v31, 3, v29
    v_add_u32 v29, {PREP_AT + 2048}, v29
    v_and_b32 v31, 15, v0
    v_lshlrev_b32 v31, 7, v31
    v_lshl_add_u32 v28, v28, 4, v31
    v_add_u32 v28, {PREP_AT + 4096}, v28
    s_waitcnt vmcnt(0)
    ds_read_b64_tr_b16 v[40:41], v29
    ds_read_b64_tr_b16 v[42:43], v29 offset:128
    ds_read_b128 v[44:47], v28
    ds_read_b64_tr_b16 v[48:49], v29 offset:1024
    ds_read_b64_tr_b16 v[50:51], v29 offset:1152
    ds_read_b128 v[52:55], v28 offset:64
    ds_read_b64_tr_b16 v[32:33], v26
    ds_read_b64_tr_b16 v[34:35], v26 offset:512
    ds_read_b64_tr_b16 v[36:37], v27
    ds_read_b64_tr_b16 v[38:39], v27 offset:512
    s_waitcnt lgkmcnt(0)
    v_mfma_f32_16x16x32_bf16 v[56:59], v[40:43], v[44:47], 0
    v_mfma_f32_16x16x32_bf16 v[56:59], v[48:51], v[52:55], v[56:59]
    buffer_store_dwordx4 v[32:35], v30, {srd(SWT)}, s{sT0} offen sc1
    buffer_store_dwordx4 v[36:39], v30, {srd(SWT)}, s{sT1} offen sc1
    s_nop 7
    buffer_store_dwordx4 v[56:59], v30, {srd(SWT)}, s{sA1} offen sc1
L_noprep:""")
    def touch(self, w, sr, n, stride, chip, imm):
        a = self.a; L = a.label("L_tc"); n = -(-n*8//7)
        a(f"""s_cmp_lg_u32 s{sW}, {w}
    s_cbranch_scc1 {L}
    s_cmp_eq_u32 s{sJ}, 3
    s_cbranch_scc1 {L}
    s_mul_i32 s{sT0}, s{sC if chip else sKC}, 7
    s_add_u32 s{sT0}, s{sT0}, s{sJ}
    s_cmp_gt_u32 s{sJ}, 3
    s_subb_u32 s{sT0}, s{sT0}, 0
    s_mul_i32 s{sT0}, s{sT0}, {n*stride}
    v_lshlrev_b32 v30, {stride.bit_length()-1}, v0
    s_mov_b32 exec_lo, {hex((1 << min(n, 32))-1)}
    s_mov_b32 exec_hi, {hex((1 << max(n-32, 0))-1)}
    buffer_load_dword v31, v30, {srd(sr)}, s{sT0} offen offset:{imm}
    s_mov_b64 exec, -1
{L}:""")

    def conv1(self):
        a = self.a; groups = []; bar_at = set()
        for ch in range(8):
            par = ch % 2
            for (unit, taps) in (("A", (0, 2)), ("B", (1,))):
                bar_at.add(len(groups))
                for tap in taps:
                    for sk in range(2):
                        if unit == "A": xoff = 0; woff = 16384 + (tap//2)*8192; areg = (8 if tap == 0 else 10) + sk
                        else: xoff = 32768; woff = 32768 + 16384; areg = 8 + sk
                        for hf in range(2):
                            groups.append(dict(x=[(areg + 4*par, xoff + (2*hf + mt)*2048) for mt in range(2)],
                                               w=((ch, tap, sk), [(16 + 2*par + nt, woff + sk*4096) for nt in range(2)]),
                                               mf=[(32 + 16*hf + 4*m, m % 2, m//2, len(groups) < 2) for m in range(4)]))
        def hook(u):
            if u == 1:
                L = a.label("L_pb")
                a(f"s_cmp_lg_u32 s{sW}, 0\ns_cbranch_scc1 {L}\ns_mov_b64 exec, 1\ns_waitcnt vmcnt(0)\nbuffer_store_byte v120, v121, {srd(SDBG)}, 0 offen sc1\ns_mov_b64 exec, -1\n{L}:")
            if u == self.mallpf:
                self.touch(1, SW2, 48, 128, True, 0); self.touch(2, SWF, 16, 128, True, 0)
            if u == self.s3rest:
                self.touch(1, SW2, 48, 1024, False, 384); self.touch(3, SWF, 16, 1024, False, 384)
            if u == 11: a(f"buffer_load_dword v28, v7, {srd(SDBG)}, 0 offen sc1")
            if u == 14: self.pubcheck(28, 7)
        self.stream16(groups, bar_at, True, RA=self.c1ra, RW=self.c1rw, barhook=hook, hard=self.c1hard)
        self.stamp("c", "c1mfma")
        a("s_nop 7")
        for hf in range(2):
            pk = 112 + 8*hf
            self.gelu_pack(32+16*hf, 16, pk)
            self.swap(pk, 2)
            if hf == 0:
                a("s_nop 1")
                for i in range(4): a(f"v_cndmask_b32 v{pk+i}, v{pk+i}, 0, s[{sZM}:{sZM+1}]")
            self.tile_store(WS_H + hf*2048, 5, pk, (0, 1024))
        a(f"s_lshr_b32 s{sT1}, s{sW}, 1\ns_lshl_b32 s{sT1}, s{sT1}, 12\ns_add_u32 s{sT1}, s{sT1}, {C2_H[0]}\nv_and_b32 v26, 0x3fff, v5\nv_add_u32 v26, s{sT1}, v26")
        for i in range(4): a(f"ds_write_b128 v26, v[{112+4*i}:{115+4*i}] offset:{1024*i}")
        self.stamp("c", "xc1epi")
        self.set_flag(FL_H)
        self.stamp("c", "c1flag")

    def base3(self, lo, mid, hi, addr):
        if addr >= 114688: return hi, addr - 114688
        if addr >= MID: return mid, addr - MID
        return lo, addr
    def conv2(self):
        a = self.a
        a(f"s_lshr_b32 s{sT1}, s{sW}, 1\ns_lshl_b32 s{sT2}, s{sT1}, 12")
        self.act_addrs(8, sT2, 0, lE)
        self.act_addrs(10, sT2, 1, lE)
        for i in range(4): a(f"v_add_u32 v{12+i}, {lS-lE}, v{8+i}")
        for nt in range(2): a(f"v_add_u32 v{18+nt}, {MID}, v{16+nt}\nv_add_u32 v{20+nt}, 114688, v{16+nt}")
        a("s_waitcnt lgkmcnt(0)\ns_barrier")
        taps = (0, 2, 1)
        def wreg(n, e=None):
            f, r = ("a", 4*n) if n < 32 else ("v", 48+4*(n-32))
            return f"{f}[{r}:{r+3}]" if e is None else f"{f}[{r+2*e}:{r+2*e+1}]"
        groups = []; bar_at = set()
        for v in range(8):
            h, hr = (C2_H[v] - lE, 0) if C2_H[v] < lS else (C2_H[v] - lS, 4)
            breg, wb = self.base3(16, 18, 20, C2_W[v])
            if v: bar_at.add(len(groups))
            for i in range(6):
                tap, sk = taps[i//2], i % 2
                areg = (10 if tap == 2 else 8) + sk + hr; aoff = h + (8192 if tap == 1 else 0); boff = wb + tap*8192 + sk*4096
                x = [(areg, aoff + mt*2048) for mt in range(2)]
                if v < 3:
                    for nt in range(2):
                        for e in range(2): a(f"ds_read_b64_tr_b16 {wreg(12*v+2*i+nt, e)}, v{breg+nt} offset:{boff + 512*e}")
                    if i % 2 == 1: a("s_waitcnt lgkmcnt(4)")
                    groups.append(dict(x=x, w=None, mf=[(32+4*m, wreg(12*v+2*i + m % 2), m//2, not groups) for m in range(4)]))
                else:
                    groups.append(dict(x=x, w=((v, i), [(breg+nt, boff) for nt in range(2)]), mf=[(32+4*m, m % 2, m//2, False) for m in range(4)]))
        a("s_waitcnt lgkmcnt(0)")
        self.stream16(groups, bar_at, False, RA=self.c2ra, RW=self.c2rw)
        self.stamp("c", "c2mfma")
        a(f"""v_and_b32 v26, 15, v0
    v_lshrrev_b32 v27, 4, v0
    v_lshlrev_b32 v13, 8, v26
    v_lshl_add_u32 v13, v27, 4, v13
    s_lshl_b32 s{sT0}, s{sJ}, 11
    s_lshl_b32 s{sT1}, s{sW}, 6
    s_add_u32 s{sT0}, s{sT0}, s{sT1}
    v_add_u32 v13, s{sT0}, v13
    v_lshlrev_b32 v28, 4, v26
    v_lshl_add_u32 v28, v27, 8, v28
    s_lshl_b32 s{sT0}, s{sJ}, 2
    s_add_u32 s{sT0}, s{sT0}, s{sW}
    s_lshl_b32 s{sT0}, s{sT0}, 13
    s_lshl_b32 s{sT1}, s{sB}, 7
    s_add_u32 s{sT0}, s{sT0}, s{sT1}
    s_add_u32 s{sT0}, s{sT0}, {GP_AT}
    s_add_u32 s{sT1}, s{sT0}, 4096
    s_mov_b32 exec_lo, 0x00ff00ff
    s_mov_b32 exec_hi, 0x00ff00ff""")
        for p in range(8):
            a(f"buffer_load_dwordx4 v[{64+4*p}:{67+4*p}], v28, {srd(SWT)}, s{sT0 if p < 4 else sT1} offen offset:{(p % 4)*1024} sc1")
        a("s_mov_b64 exec, -1")
        for mt in range(2):
            self.gelu_pack(32+8*mt, 8, 120+4*mt)
            self.swap(120+4*mt, 1)
            self.tile_store(WS_F + mt*2048, 22, 120+4*mt, (0,))
        a(f"s_lshr_b32 s{sT1}, s{sW}, 1\ns_lshl_b32 s{sT1}, s{sT1}, 12\ns_add_u32 s{sT1}, s{sT1}, {F_AT[0]}\nv_and_b32 v30, 0x1fff, v22\nv_add_u32 v30, s{sT1}, v30")
        for i in range(2): a(f"ds_write_b128 v30, v[{120+4*i}:{123+4*i}] offset:{2048*i}")
        self.set_flag(FL_FA, younger=1)
        self.stamp("c", "c2flag")
        if self.yearly: a("s_waitcnt lgkmcnt(0)\ns_barrier")
        p = lambda r: f"v[{r}:{r+1}]"
        for st in (4, 8, 16):
            for r in range(64, 96, 2*st):
                for h in (0, 2): a(f"v_pk_add_f32 {p(r+h)}, {p(r+h)}, {p(r+st+h)}")
        self.set_flag(FL_FB, younger=1)
        if not self.yearly: a("s_waitcnt lgkmcnt(0)\ns_barrier")

    def ge_fe(self):
        a = self.a
        a(f"""v_cvt_pk_bf16_f32 v36, v64, v65
    v_cvt_pk_bf16_f32 v37, v66, v67
    v_lshlrev_b32 v32, 16, v36
    v_and_b32 v33, 0xffff0000, v36
    v_lshlrev_b32 v34, 16, v37
    v_and_b32 v35, 0xffff0000, v37
    s_mov_b32 exec_lo, 0x00ff00ff
    s_mov_b32 exec_hi, 0x00ff00ff""")
        self.range_flag(14, [32, 33, 34, 35])
        for i in range(4): a(f"v_mul_f32 v{32+i}, s{sTC}, v{32+i}")
        for i in range(4): a(f"v_exp_f32 v{40+i}, v{32+i}")
        a(f"s_mov_b32 s{sT1}, {WS_EB}\ns_mov_b32 s{sT2}, {WS_BB}")
        self.xstore([f"buffer_store_dwordx4 v[40:43], v13, {srd(SWS)}, s{sT1} offen", f"buffer_store_dwordx4 v[32:35], v13, {srd(SWS)}, s{sT2} offen"])
        a("s_mov_b64 exec, -1")
        a(f"s_lshr_b32 s{sT1}, s{sW}, 1\ns_lshl_b32 s{sT2}, s{sT1}, 12")
        self.act_addrs(8, sT2, 0, 0)
        for sk in range(2): a(f"v_add_u32 v{10+sk}, {MID}, v{8+sk}")
        self.stamp("c", "xge")
        for c in range(8):
            breg, wb = self.base3(16, 18, 20, WF_AT[c])
            for sk in range(2):
                for nt in range(2):
                    for e in range(2):
                        r = 16*c + 8*sk + 4*nt + 2*e
                        a(f"ds_read_b64_tr_b16 a[{r}:{r+1}], v{breg+nt} offset:{wb + sk*4096 + 512*e}")
            a("s_waitcnt lgkmcnt(4)")
        a("s_waitcnt lgkmcnt(0)")
        for mt in range(2):
            groups = []
            for c in range(8):
                areg, ab = self.base3(8, 10, None, F_AT[c])
                groups.append(dict(x=[(areg+sk, ab + mt*2048) for sk in range(2)], w=None,
                                   mf=[(32 + 8*mt + 4*(m % 2), f"a[{16*c+4*m}:{16*c+4*m+3}]", m//2, c == 0 and m < 2) for m in range(4)]))
            if mt == 0:
                self.stream16(groups, set(self.abars), False, RA=self.fra,
                              barhook=lambda i: (self.stamp("c", f"xfb{i}"), self.set_flag(FL_GE, val=14) if i == 0 else None))
                self.stamp("c", "femfma")
            else:
                self.stream16(groups, {1}, False, RA=self.fra,
                              grouphook=lambda i: (self.set_flag(FL_FEA, val=12), self.stamp("c", "feflag")) if i == self.flag_at else None)
            a("s_nop 7")
            for i in range(4): a(f"v_cvt_pk_bf16_f32 v{120+4*mt+i}, v{32+8*mt+2*i}, v{33+8*mt+2*i}")
            self.swap(120+4*mt, 1)
            self.tile_store(f"s{sFE}", 23, 120+4*mt, (2048*mt,))
            self.range_flag(12 if mt == 0 else 29, list(range(32+8*mt, 40+8*mt)))
        self.stamp("c", "xfeb")
        self.joint_setup()

    def dma(self, vreg, s, soff, imm, flags=""):
        if self.cur[0] in ("w2p", "wf") and len(self.q) > self.pace: self.a(f"s_waitcnt vmcnt({self.pace})")
        self.a(f"buffer_load_dwordx4 v{vreg}, {srd(s)}, {soff} offen" + (f" offset:{imm}" if imm else "") + f" {flags} lds")
        self.q.append(self.cur)
    def m0(self, const, sreg):
        self.a(f"s_add_u32 m0, s{sreg}, {const}")
    def wait_unit(self, *names):
        n = len(self.q) - 1 - max(i for i, x in enumerate(self.q) if x in names)
        assert n < 64
        self.a(f"s_waitcnt vmcnt({n})")
    def loader_setup(self):
        self.a(f"""s_and_b32 s{sLW}, s{sW}, 3
    s_lshl_b32 s{sM4}, s{sLW}, 12
    v_lshrrev_b32 v1, 3, v0
    v_and_b32 v2, 7, v0
    v_and_b32 v3, 6, v1
    v_xor_b32 v4, v2, v3
    v_lshlrev_b32 v4, 4, v4
    s_mul_i32 s{sT0}, s{sQ}, 252
    s_lshl_b32 s{sT1}, s{sLW}, 6
    s_add_u32 s{sT0}, s{sT0}, s{sT1}
    s_sub_u32 s{sT0}, s{sT0}, 3
    v_lshl_add_u32 v6, v1, 1, s{sT0}
    v_lshl_add_u32 v8, v6, 10, v4
    v_add_u32 v9, {15360}, v8
    v_add_u32 v10, {2*15360}, v8
    v_add_u32 v11, {3*15360}, v8
    v_add_u32 v12, 1024, v8
    v_add_u32 v13, 1024, v9
    v_add_u32 v14, 1024, v10
    v_add_u32 v15, 1024, v11
    v_bfrev_b32 v29, 1
    v_cmp_gt_i32 vcc, 0, v8
    v_cmp_gt_i32 s[84:85], 0, v12
    v_and_b32 v28, 2, v1
    v_xor_b32 v28, v28, v2
    v_cndmask_b32 v8, v8, v29, vcc
    v_cndmask_b32 v12, v12, v29, s[84:85]
    v_lshlrev_b32 v28, 4, v28
    v_lshl_add_u32 v28, v1, 10, v28
    s_lshl_b32 s{sT0}, s{sJ}, 7
    v_add_u32 v16, s{sT0}, v28
    v_xor_b32 v5, 64, v16
    v_add_u32 v17, 7168, v5
    v_add_u32 v18, {2*7168}, v16
    v_add_u32 v19, {3*7168}, v5
    s_lshr_b32 s{sT0}, s{sLW}, 1
    s_lshl_b32 s{sT0}, s{sT0}, 20
    s_and_b32 s{sT1}, s{sLW}, 1
    s_lshl_b32 s{sT1}, s{sT1}, 15
    s_add_u32 s{sA1}, s{sT0}, s{sT1}
    s_lshl_b32 s{sB1}, s{sLW}, 14
    s_lshl_b32 s{sM2}, s{sLW}, 11""")
        self.stamp2("xpre")
        self.srd_first()
        self.stamp2("xkarg")
        self.q = []
    def loader_setup2(self):
        self.a(f"""v_lshlrev_b32 v6, 4, v0
    v_add_u32 v20, s{sM4}, v6
    s_lshr_b32 s{sFO}, s{sLW}, 1
    s_lshl_b32 s{sFO}, s{sFO}, 12
    s_and_b32 s{sT0}, s{sLW}, 1
    s_lshl_b32 s{sT0}, s{sT0}, 10
    s_add_u32 s{sFO}, s{sFO}, s{sT0}
    v_add_u32 v24, s{sFO}, v6
    {self.slice_s(sT0, 3, 7)}
    v_add_u32 v25, s{sT0}, v28
    v_xor_b32 v26, 64, v25
    v_add_u32 v26, 7168, v26
    {self.slice_s(sT0, 2, 7)}
    v_add_u32 v21, s{sT0}, v28
    v_xor_b32 v22, 64, v21
    v_add_u32 v22, 7168, v22
    v_and_b32 v28, 31, v0
    v_lshlrev_b32 v28, 2, v28
    v_add_u32 v28, {WS_FL}, v28
    v_lshlrev_b32 v3, 7, v0
    s_lshl_b32 s{sT0}, s{sJ}, 14
    s_lshl_b32 s{sT1}, s{sLW}, 13
    s_add_u32 s{sT0}, s{sT0}, s{sT1}
    {self.slice_s(sT1, 2, 13)}
    s_add_u32 s{sT1}, s{sT1}, {WS_F}
    s_cmp_eq_u32 s{sLW}, 2
    s_cselect_b32 s{sT0}, s{sT1}, s{sT0}
    v_add_u32 v30, s{sT0}, v3
    s_cmp_lg_u32 s{sLW}, 3
    s_cbranch_scc1 L_tv
    v_and_b32 v30, 15, v0
    v_lshlrev_b32 v30, 7, v30
    v_lshrrev_b32 v29, 4, v0
    v_lshl_add_u32 v30, v29, 14, v30
    s_lshl_b32 s{sT1}, s{sJ}, 11
    s_add_u32 s{sT1}, s{sT1}, {WS_EB}
    v_add_u32 v30, s{sT1}, v30
    v_cmp_lt_u32 vcc, 31, v0
    v_add_u32 v29, {WS_FL - 32*128}, v3
    s_nop 0
    v_cndmask_b32 v30, v30, v29, vcc
L_tv:
    v_lshlrev_b32 v1, 2, v0""")
    def chunk_s(self, v, rot):
        self.a(f"s_add_u32 s{sT2}, s{rot}, {v}\ns_and_b32 s{sT2}, s{sT2}, 7")
    def c1_unit(self, u):
        a = self.a; ch, isB = divmod(u, 2); self.cur = ("c1", u)
        base = (C1_B if isB else C1_A)[ch % 2]
        self.chunk_s(ch, sROT)
        def xpart():
            self.m0(base, sM4)
            a(f"s_lshl_b32 s{sT0}, s{sT2}, 7")
            for i in range(4): self.dma((12 if isB else 8)+i, SX, f"s{sT0}", 1024*i)
        def wpart():
            a(f"s_lshl_b32 s{sT0}, s{sT2}, 16")
            self.m0(base + 16384, sM2 if isB else sM4)
            if isB: a(f"s_add_u32 s{sT0}, s{sT0}, s{sB1}\ns_add_u32 s{sT0}, s{sT0}, 524288")
            else: a(f"s_add_u32 s{sT0}, s{sT0}, s{sA1}")
            for i in range(2 if isB else 4): self.dma(16+i, SW1, f"s{sT0}", 1024*i)
        if isB: wpart(); xpart()
        else: xpart(); wpart()
    def w2_unit(self, v, pre=False):
        a = self.a; self.cur = ("w2p" if pre else "w2", v)
        self.chunk_s(v, sROT2)
        a(f"s_lshl_b32 s{sT0}, s{sT2}, 16\ns_add_u32 s{sT0}, s{sT0}, s{sB1}")
        for tap in range(3):
            self.m0(C2_W[v] + tap*8192, sM2)
            a(f"s_add_u32 s{sT0}, s{sT0}, 524288" if tap else "s_nop 0")
            for i in range(2): self.dma(21+i, SW2, f"s{sT0}", 1024*i)
    def h_unit(self, v):
        a = self.a; self.cur = ("h", v)
        self.chunk_s(v, sROT2)
        self.m0(C2_H[v], sM4)
        a(f"s_lshl_b32 s{sT0}, s{sT2}, 14")
        for i in range(4): self.dma(20, SWS, f"s{sT0}", 1024*i, "sc1")
    def wf_unit(self, c, paced):
        a = self.a; self.cur = ("wf" if paced else "wfn", c)
        self.chunk_s(c, sROT2)
        self.m0(WF_AT[c], sM2)
        a(f"s_lshl_b32 s{sT0}, s{sT2}, 16\ns_add_u32 s{sT0}, s{sT0}, s{sB1}")
        for i in range(2): self.dma(25+i, SWF, f"s{sT0}", 1024*i)
    def f_unit(self, c, part):
        a = self.a; self.cur = ("f", c, part)
        self.chunk_s(c, sROT2)
        self.m0(F_AT[c], sFO)
        a(f"s_lshl_b32 s{sT0}, s{sT2}, 13\ns_add_u32 s{sT0}, s{sT0}, {WS_F}")
        self.dma(24, SWS, f"s{sT0}", 2048*part, "sc1")

    def loader(self):
        a = self.a
        self.loader_setup()
        for u in range(2): self.c1_unit(u)
        self.stamp2("xiss")
        self.srd_rest()
        for i, n in enumerate(self.early):
            k = self.nst["l"]; self.nst["l"] += 1; self.names["l"].append(n); a(f"s_waitcnt lgkmcnt(0)\ns_mov_b32 s{STAMP0+2*k}, s{84+2*i}")
        self.loader_setup2()
        for u in range(2, 4): self.c1_unit(u)
        nxt = 4
        for u in range(16):
            self.wait_unit(("c1", u)); a("s_barrier")
            self.stamp("l", f"c1u{u}" if u in (0, 15) else f"xc1u{u}")
            if u == 11: a(f"buffer_load_dword v2, v1, {srd(SDBG)}, 0 offen sc1"); self.q.append(("pub", 0))
            if u == 13: self.pubcheck(2, 1, first_wait=False)
            while nxt <= min(u + (3 if u < self.lasw else 2), 15): self.c1_unit(nxt); nxt += 1
            if u == self.ptu:
                a(f"s_cmp_eq_u32 s{sLW}, 3\ns_cselect_b32 exec_hi, 0x3f, -1\nbuffer_load_dword v31, v30, {srd(SWS)}, 0 offen sc1\ns_mov_b64 exec, -1")
                self.q.append(("touch", 0))
        for v in range(4): self.w2_unit(v, True)
        self.wait_unit(("w2p", 2)); a("s_barrier")
        self.poll(28, FL_H); self.q = []
        self.stamp("l", "sync1")
        self.h_unit(1); self.h_unit(2)
        nwt = 0
        def wt(n, pace):
            nonlocal nwt
            while nwt < n:
                if pace and len(self.q) > pace: a(f"s_waitcnt vmcnt({pace})")
                for ins in self.wt_load(nwt): a(ins)
                self.q.append(("wt", nwt)); nwt += 1
        for v in range(1, 8):
            self.wait_unit(("h", v), ("w2", v)); a("s_barrier")
            self.stamp("l", {1: "c2v0", 7: "c2v7"}.get(v, f"xc2v{v}"))
            if v < 6:
                for it in self.c2plan[v-1].split(): (self.h_unit if it[0] == "h" else self.w2_unit)(int(it[1]))
            if v == self.js_at: self.joint_setup()
            if v == 6:
                a(self.slice_s(sROT2, 2, 0))
                for c in range(3): self.wf_unit(c, False)
            if v == 7:
                for c in range(3, 8): self.wf_unit(c, True)
        wt(self.wt_w2, self.pace)
        self.wait_unit(("wf", 7)); a("s_barrier")
        self.poll(28, FL_FA); self.q = []
        self.stamp("l", "sync2")
        b0, b1 = self.abars
        for c in range(1, b1): self.f_unit(c, 0)
        a(self.flag_load(28, FL_FB)); self.q.append(("fb", 0))
        for c in range(b1, 8): self.f_unit(c, 0)
        self.wait_unit(("fb", 0)); a("s_barrier")
        self.stamp("l", "xfb0")
        a(f"v_cmp_eq_u32 vcc, {1 if self.forcerare else 0}, v4\ns_cbranch_vccnz L_fb_late")
        for c in range(1, 8): self.f_unit(c, 1)
        self.wait_unit(("f", 7, 0)); a("s_barrier\nL_fb_join:")
        main = self.a; self.a = Asm(); self.a.nlab = 9000; q = self.q
        self.a("L_fb_late:\ns_waitcnt vmcnt(0)\ns_barrier")
        self.poll(28, FL_FB)
        for c in range(1, 8): self.f_unit(c, 1)
        self.a("s_branch L_fb_join")
        self.stubs += self.a.lines; self.a = main; self.q = q[:-7]
        wt(self.wt_w2 + self.wt_early, 0)
        self.wait_unit(("f", 7, 1)); a("s_barrier")
        self.stamp("l", "xfb2")
        self.poll(28, FL_GE)
        a(f"v_lshlrev_b32 v29, 4, v0\ns_add_u32 m0, s{sM4}, {EB_AT}\ns_add_u32 s{sT0}, s{sM4}, {WS_EB}")
        self.q = []; self.cur = ("eb", 0)
        for i in range(4): self.dma(29, SWS, f"s{sT0}", 1024*i, "sc1")
        wt(min(32, self.wt_w2 + self.wt_early + self.wt_l2), self.pace3)
        self.stamp("l", "xwti")
        self.nwt_l = nwt
        self.n_after_eb = len(self.q) - 4

    FER = [8, 10, 24, 26]
    def joint_setup(self):
        self.a(f"""v_mov_b32 v15, v2
    v_and_b32 v1, 31, v0
    v_mul_u32_u24 v1, 1040, v1
    v_lshrrev_b32 v2, 5, v0
    v_lshl_add_u32 v1, v2, 4, v1             ; A read
    s_and_b32 s{sT2}, s{sJ}, 1
    s_lshl_b32 s{sT0}, s{sT2}, 3
    s_add_u32 s{sT0}, s{sT0}, s{sW}
    s_lshl_b32 s{sT0}, s{sT0}, 15
    v_lshlrev_b32 v12, 4, v0
    v_add_u32 v12, s{sT0}, v12
    s_lshl_b32 s{sT2}, s{sT2}, 9
    v_mov_b32 v11, 8320
    v_lshrrev_b32 v8, 4, v0
    v_and_b32 v9, 15, v0
    s_lshl_b32 s{sT0}, s{sW}, 7
    v_lshl_add_u32 v10, v9, 3, s{sT0}
    s_lshl_b32 s{sT1}, s{sW}, 11
    v_lshl_add_u32 v13, v9, 4, s{sT1}
    s_lshl_b32 s{sWR}, s{sKC}, 2
    s_lshr_b32 s{sT1}, s{sJ}, 1              ; pair
    s_add_u32 s{sWR}, s{sWR}, s{sT1}
    s_and_b32 s{sWR}, s{sWR}, 14
    s_lshl_b32 s{sT3}, s{sWR}, 6
    v_subrev_u32 v2, s{sT3}, v10
    v_and_b32 v2, 1023, v2
    v_mad_u32_u24 v2, v8, v11, v2            ; A write
    s_lshl_b32 s{sT3}, s{sT1}, 9
    s_lshl_b32 s{sT0}, s{sW}, 14
    s_add_u32 s{sT3}, s{sT3}, s{sT0}
    v_lshlrev_b32 v3, 3, v9
    v_lshl_add_u32 v3, v8, 7, v3
    v_add_u32 v3, s{sT3}, v3
    v_lshlrev_b32 v5, 10, v9
    v_lshl_add_u32 v5, v8, 4, v5
    s_lshl_b32 s{sT1}, s{sT1}, 15
    s_add_u32 s{sT1}, s{sT1}, s{sT2}
    s_lshl_b32 s{sT2}, s{sW}, 6
    s_add_u32 s{sT1}, s{sT1}, s{sT2}
    v_add_u32 v5, s{sT1}, v5
    s_lshl_b32 s{sWR}, s{sWR}, 11
    v_lshlrev_b32 v7, 2, v0
    v_add_u32 v7, {WS_FL}, v7
    v_and_b32 v28, 31, v0
    v_lshlrev_b32 v28, 2, v28
    v_add_u32 v28, {WS_FL}, v28""")
    def wt_load(self, i):
        return [f"buffer_load_dwordx4 a[{4*i}:{4*i+3}], v12, {srd(SWT)}, s{sWR} offen offset:{(i % 4)*1024} sc1"] + \
               ([f"s_add_u32 s{sWR}, s{sWR}, 4096", f"s_and_b32 s{sWR}, s{sWR}, 0x7fff"] if i % 4 == 3 else [])
    def fe_load(self, ps):
        return f"s_add_u32 s{sT2}, s{sFE}, {PASS_ROW[ps]*128}\nbuffer_load_dwordx2 v[{self.FER[ps]}:{self.FER[ps]+1}], v3, {srd(SWS)}, s{sT2} offen sc1"
    def tanh_ops(self, ps, form):
        p = lambda r: f"v[{r}:{r+1}]"
        f0, f1 = self.FER[ps], self.FER[ps]+1
        o = [f"v_lshlrev_b32 v112, 16, v{f0}", f"v_and_b32 v113, 0xffff0000, v{f0}",
             f"v_lshlrev_b32 v114, 16, v{f1}", f"v_and_b32 v115, 0xffff0000, v{f1}"]
        o += [f"v_mul_f32 v{112+i}, s{sTC}, v{112+i}" for i in range(4)]
        if form != "slow": o += [f"v_exp_f32 v{112+i}, v{112+i}" for i in range(4)]
        for u in range(8):
            t = (116, 20)[u % 2]; e = 80 + 4*u; d = 16 + 2*(u % 2)
            if form == "slow":
                o += [f"v_add_f32 v{t+i}, v{112+i}, v{e+i}" for i in range(4)]
                o += [f"v_exp_f32 v{t+i}, v{t+i}" for i in range(4)]
                o += [f"v_add_f32 v{t+i}, 1.0, v{t+i}" for i in range(4)]
            elif form == "pk": o += [f"v_pk_fma_f32 {p(t+i)}, {p(112+i)}, {p(e+i)}, 1.0 op_sel_hi:[1,1,0]" for i in (0, 2)]
            else: o += [f"v_fma_f32 v{t+i}, v{112+i}, v{e+i}, 1.0" for i in range(4)]
            o += [f"v_rcp_f32 v{t+i}, v{t+i}" for i in range(4)]
            if form == "pk": o += [f"v_pk_fma_f32 {p(t+i)}, {p(t+i)}, -2.0, 1.0 op_sel_hi:[1,0,0]" for i in (0, 2)]
            else: o += [f"v_fma_f32 v{t+i}, v{t+i}, -2.0, 1.0" for i in range(4)]
            o += [f"v_cvt_pk_bf16_f32 v{d}, v{t}, v{t+1}", f"v_cvt_pk_bf16_f32 v{d+1}, v{t+2}, v{t+3}"]
            o += [f"ds_write_b64 v2, v[{d}:{d+1}] offset:{JA[ps % 2] + u*1040}"]
        return o
    def out_ops(self, ps):
        acc = 32 + 16*(ps % 2); o0 = PASS_ROW[ps]*8192
        o = [f"v_cvt_pk_bf16_f32 v{120+i}, v{acc+2*i}, v{acc+2*i+1}" for i in range(8)]
        o += [f"v_permlane16_swap_b32 v{120+i}, v{124+i}" for i in range(4)]
        o += [f"s_mov_b32 s{sT0}, {o0}", f"buffer_store_dwordx4 v[120:123], v5, {srd(SOUT)}, s{sT0} offen sc1",
              f"s_mov_b32 s{sT1}, {o0+16384}", f"buffer_store_dwordx4 v[124:127], v5, {srd(SOUT)}, s{sT1} offen sc1"]
        return o
    def jpass(self, ps, form, wt_from=32):
        a = self.a; acc = 32 + 16*(ps % 2); R = 3
        ring = lambda s: 64 + 4*(s % 4)
        rd = lambda s: f"ds_read_b128 v[{ring(s)}:{ring(s)+3}], v1 offset:{JA[ps % 2] + 32*s}"
        out = self.out_ops(ps-1) if ps else []
        tan = self.tanh_ops(ps+1, form) if ps < 3 else []
        start = {i: 2 for i in range(8)} if ps else {}
        if ps == 1: start.update({len(out)+i: self.t2_at for i in range(4)})
        gaps = sched.schedule(out + tan, 32, self.budget + (12 if form == "slow" else 0), start=start)
        q = []; issued = wt_from; waited = -1; nst = 0; few = ps != 1
        for s in range(R): a(rd(s)); q.append(("r", s))
        for s in range(32):
            n = len(q) - 1 - q.index(("r", s))
            vm = ""
            if wt_from < 32 and waited < s and s <= self.chk_at[1]:
                assert issued > s
                upto = min(s + 1, issued - 1) if s % 2 == 0 else s
                vm = f"vmcnt({issued - 1 - upto + (s >= self.chk_at[0])}) "; waited = upto
            a(f"s_waitcnt {vm}lgkmcnt({n})")
            a(f"v_mfma_f32_32x32x16_bf16 v[{acc}:{acc+15}], a[{4*s}:{4*s+3}], v[{ring(s)}:{ring(s)+3}], {'0' if s == 0 else f'v[{acc}:{acc+15}]'}")
            if s + R < 32: a(rd(s+R)); q.append(("r", s+R))
            for ins in gaps[s]:
                if not few and ins in tan[:4]: a(f"s_waitcnt vmcnt({nst})"); few = True
                a(ins)
                if ins.startswith("ds_"): q.append(("w", 0))
                if ins.startswith("buffer_store"): nst += 1
            while issued < 32 and (issued - wt_from) * self.chk_at[0] < (s + 1) * (32 - wt_from):
                for ins in self.wt_load(issued): a(ins)
                issued += 1
            if ps == 0 and s == self.chk_at[0] - 1:
                assert issued == 32
                a(self.flag_load(28, FL_FEB))
            if ps == 0 and s == self.chk_at[1]:
                L = a.label("L_fl"); D = a.label("L_fd")
                a(f"s_waitcnt vmcnt(0)\nv_cmp_eq_u32 vcc, {1 if self.forcerare else 0}, v4\ns_cbranch_vccnz {L}\n{D}:")
                a(f"v_cmp_lt_u32 vcc, 1, v4\ns_cmp_lg_u64 vcc, 0\ns_cselect_b32 s{sSLOWT}, 1, {1 if self.forceslowt == 2 else 0}")
                a(self.fe_load(2)); a(self.fe_load(3))
                main = self.a; self.a = Asm(); self.a.nlab = main.nlab + 5000
                self.a(f"{L}:"); self.poll(28, FL_FEB); self.a(f"s_branch {D}")
                self.stubs += self.a.lines; self.a = main
        a("s_waitcnt lgkmcnt(0)")
    def flat(self, ops):
        return [i for g in sched.schedule(ops, 1, 0) for i in g]
    def bb_loads(self):
        self.a("s_waitcnt lgkmcnt(0)")
        for u in range(8):
            self.a(f"s_mov_b32 s{sT0}, {WS_BB + u*256}\nbuffer_load_dwordx4 v[{80+4*u}:{83+4*u}], v13, {srd(SWS)}, s{sT0} offen sc1")
        self.a("s_waitcnt vmcnt(0)")
    def joint(self):
        a = self.a
        for role in "cl":
            a(f"L_joint_{role}:\nv_mov_b32 v30, {lS1}")
            if role == "c":
                L = a.label("L_np"); a(f"s_cmp_lg_u32 s{sW}, 0\ns_cbranch_scc1 {L}")
                self.poll(7, FL_FEA)
                a(f"v_cmp_lt_u32 vcc, 1, v4\ns_cmp_lg_u64 vcc, 0\ns_cselect_b32 s{sT0}, 1, {1 if self.forceslowt == 1 else 0}\nv_mov_b32 v4, s{sT0}\nds_write_b32 v30, v4\ns_waitcnt lgkmcnt(0)\n{L}:")
            else: a(f"s_waitcnt vmcnt({self.n_after_eb})")
            self.stamp(role, "sync3")
            a("s_barrier")
            a(self.fe_load(0)); a(f"ds_read_b32 v4, v30\nv_add_u32 v14, {EB_AT}, v13")
            for u in range(8): a(f"ds_read_b128 v[{80+4*u}:{83+4*u}], v14 offset:{u*256}")
            a(f"s_waitcnt lgkmcnt(8)\nv_readfirstlane_b32 s{sSLOWT}, v4\ns_waitcnt vmcnt(0)")
            if role == "c": self.set_flag(FL_FEB, val=29, addr=15)
            a(self.fe_load(1))
            a(f"s_cmp_lg_u32 s{sSLOWT}, 0\ns_cbranch_scc1 L_jslow_{role}\ns_waitcnt lgkmcnt(0)")
            self.stamp(role, "jpre")
            ops = self.flat(self.tanh_ops(0, "pk"))
            nwt, n0 = (0, self.wt_t0) if role == "c" else (self.nwt_l, min(self.wt_t0l, 32 - self.nwt_l))
            for i, ins in enumerate(ops):
                a(ins)
                if n0 and (i+1)*n0//len(ops) > i*n0//len(ops):
                    for l in self.wt_load(nwt): a(l)
                    nwt += 1
            a(f"s_waitcnt vmcnt({n0}) lgkmcnt(0)\ns_barrier")
            self.stamp(role, "t0")
            self.jpass(0, "fast", nwt)
            a(f"s_cmp_lg_u32 s{sSLOWT}, 0\ns_cbranch_scc1 L_jslow_b\ns_barrier")
            self.stamp(role, "p0")
            if role == "c": a("s_branch L_p1")
        a("L_p1:")
        for ps in range(1, 4):
            if ps == 2:
                L = a.label("L_nwb")
                a(f"s_or_b32 s{sT0}, s{sJ}, s{sW}\ns_or_b32 s{sT0}, s{sT0}, s{sKC}\ns_cbranch_scc1 {L}\ns_cmp_eq_u32 s{sFAST}, 0\ns_cbranch_scc1 {L}\nbuffer_wbl2 sc1\n{L}:")
            self.jpass(ps, "fast")
            if ps < 3: a("s_barrier")
            self.stamp("j", f"xp{ps}")
        a("s_nop 7\ns_nop 3")
        for ins in self.flat(self.out_ops(3)): a(ins)
        a("s_branch L_fin" if self.stamps else "s_endpgm")
        a("L_jslow_b:")
        self.bb_loads()
        a("s_barrier\ns_branch L_jslow_p1")
        a("L_jslow_c:")
        for i in range(32):
            if i == self.nwt_l: a("L_jslow_l:")
            for ins in self.wt_load(i): a(ins)
        assert self.nwt_l < 32 and self.nwt_l % 4 == self.nwt_l % 4
        self.bb_loads()
        for ins in self.flat(self.tanh_ops(0, "slow")): a(ins)
        a("s_waitcnt lgkmcnt(0)\ns_barrier")
        for ps in range(4):
            if ps == 1: a("L_jslow_p1:")
            self.jpass(ps, "slow")
            if ps < 3: a("s_barrier")
        a("s_nop 7\ns_nop 3")
        for ins in self.flat(self.out_ops(3)): a(ins)
        a("s_branch L_fin" if self.stamps else "s_endpgm")
        for l in self.stubs: a(l)
        a("L_fin:")
        self.stamp("j", "jend")

    def finish(self):
        a = self.a
        if self.stamps:
            a("s_waitcnt vmcnt(0)")
            self.stamp("j", "drain")
            a("s_waitcnt lgkmcnt(0)")
            if self.probe is not None:
                n0, n1, K = self.probe
                i0, i1, ie = (self.names["l"].index(n) for n in (n0, n1, "drain"))
                a(f"""s_cmp_lt_u32 s{sW}, 4
    s_cbranch_scc1 L_end
    s_sub_u32 s{sT0}, s{STAMP0+2*i1}, s{STAMP0+2*i0}
    s_mul_i32 s{sT0}, s{sT0}, {K}
    s_min_u32 s{sT0}, s{sT0}, 100000
L_spin:
    s_memrealtime s[52:53]
    s_waitcnt lgkmcnt(0)
    s_sub_u32 s52, s52, s{STAMP0+2*ie}
    s_cmp_lt_u32 s52, s{sT0}
    s_cbranch_scc1 L_spin""")
            else:
                for i in range(13): a(f"v_mov_b32 v{16+i}, s{STAMP0+2*i}")
                a(f"""s_lshl_b32 s{sT0}, s{sJ}, 3
    s_add_u32 s{sT0}, s{sT0}, s{sW}
    s_lshl_b32 s{sT0}, s{sT0}, 6
    s_add_u32 s{sT0}, s{sT0}, {WS_STAMP}
    v_mov_b32 v1, s{sT0}
    s_mov_b64 exec, 1""")
                for i in range(4): a(f"buffer_store_dwordx4 v[{16+4*i}:{19+4*i}], v1, {srd(SWS)}, 0 offen offset:{16*i}")
        a("L_end:\ns_endpgm")

    def build(self):
        a = self.a
        a(HEADER.rstrip("\n"))
        a(header([(None, 256, 512, 163840)]))
        a(kernel_begin(KN))
        self.prologue()
        self.loader()
        a("s_branch L_joint_l")
        self.compute_setup()
        self.conv1(); self.conv2(); self.ge_fe()
        n = max(self.nst.values())
        for r in "cl":
            while len(self.names[r]) < n: self.names[r].append("-")
            self.nst[r] = n
        self.joint()
        self.finish()
        a(descriptor(KN, 256, 128))
        return self.a.text()

if __name__ == "__main__":
    out = sys.argv[1] if len(sys.argv) > 1 else "k12.s"
    g = Gen(stamps=("stamps" in sys.argv))
    open(out, "w").write(g.build())
    print(g.names)
```

```python
import sys, struct
from asmlib import *
import sched
KN = "standalone__seq2seq_rnn_t_joint__speech_kernel"

def fbits(x):
    return "0x%08x" % struct.unpack("<I", struct.pack("<f", x))[0]

LOG2E = 1.4426950408889634
GC0 = -2.0 * LOG2E * 0.7978845608028654
GC1 = GC0 * 0.044715
TC = 2.0 * LOG2E

WS_H, WS_F, WS_EB, WS_BB, WS_FL, WS_STAMP, WS_FE = 0, 0x20000, 0x40000, 0x44000, 0x48000, 0x4c000, 0x50000
FL_H, FL_FA, FL_FEA, FL_GE, FL_FB, FL_FEB = range(6)
GP_AT = 0x80000
SX, SW1, SW2, SWF, SWG, SWO, SG, SOUT, SWS, SDBG, SWT = 8, 12, 16, 20, 24, 28, 32, 36, 40, 44, 92
def srd(b): return f"s[{b}:{b+3}]"
sW, sJ, sKC, sC, sQ, sB, sLW, sROT = 4, 5, 6, 7, 48, 49, 50, 51
sT0, sT1, sT2, sT3 = 3, 52, 53, 54
sA1, sB1, sCNT, sZM = 55, 56, 57, 58
sGC1, sWR, sTC, sFAST = 60, 61, 62, 63
STAMP0 = 64
sM2, sM4, sFE, sROT2, sSLOWT, sFO = 97, 98, 99, 100, 101, 96
CODE_LINES = 11
C1_A = [0, 57344]; C1_B = [32768, 90112]
lC, lD, lE, lP, lQ, lS, lA, lS1, lB = 0, 24576, 49152, 73728, 90112, 106496, 114688, 122880, 139264
PREP_AT = lA
C2_W = [lA, lB, lC, lD, lB, lC, lE, lD]
C2_H = [lP, lQ, lE, lS, lS1, lP, lQ, lS]
WF_AT = [lB, lB+8192, lB+16384, lS1, lS1+8192, lC, lC+8192, lC+16384]
F_AT = [lP, lD, lD+8192, lD+16384, lE, lE+8192, lE+16384, lQ]
EB_AT = lS
MID = 49152
JA = [0, 33280]
PASS_ROW = [0, 32, 16, 48]

HEADER = """; Kernarg (80 bytes, pointers only): x w1 w2 g w_f w_g w_o | d_out | d_debug | d_ws
;
"""

class Gen:
    def __init__(self, stamps=False, clk="s_memrealtime", only=None, probe=None, forceslow=False, forceslowt=False, forcerare=False,
                 budget=26, pace=5, pace3=4, wt_w2=6, wt_early=4, wt_l2=4, wt_t0=14, jd2=7, jd3=2, flag_at=5, chk_at=(22, 28), t2_at=3,
                 abars=(1, 4), fra=2, wt_t0l=6, yearly=True, js_at=3, c1ra=2, c1rw=(2, 2), c2rw=(2, 2), c2ra=2, lasw=10, ptu=14, c1hard=(), xmode=None, outtouch=None, w2t=(), w2early=(), w2pre=4, zfill=None, nobb=True, smem=None, td=1, pd=0, cvt=5, o_at=2, maxins=8, rdpos=0, jr=3, phase=None, phase0=True, ftu=None, mallpf=1, s3rest=1, c2plan=("h3 w4", "h4 w5", "h5", "h6 w6", "h7 w7")):
        self.__dict__.update(locals()); del self.__dict__["self"]
        self.early = []; self.stubs = []; self.a = Asm(); self.nst = {"c": 1, "l": 1}; self.names = {"c": ["setup"], "l": ["setup"]}
    def stamp(self, role, name):
        if not self.stamps: return
        if self.only and name not in self.only and name != "drain": return
        if not self.only and name.startswith("x"): return
        if role == "j":
            n = max(self.nst.values())
            for r in "cl":
                while len(self.names[r]) < n: self.names[r].append("-")
                self.names[r].append(name); self.nst[r] = n+1
            i = n
        else:
            i = self.nst[role]; self.nst[role] += 1; self.names[role].append(name)
        assert i < 13
        self.a(f"{self.clk} s[{STAMP0+2*i}:{STAMP0+2*i+1}]")

    def stamp2(self, n):
        if self.stamps and self.only and n in self.only:
            self.a(f"{self.clk} s[{84+2*len(self.early)}:{85+2*len(self.early)}]"); self.early.append(n)
    def prologue(self):
        self.a(f"""
    s_cmp_ge_u32 s2, 256
    s_cbranch_scc1 L_end
    {self.clk + " s[90:91]" if self.stamps else ""}
    s_load_dwordx16 s[64:79], s[0:1], 0      ; x w1 w2 g w_f w_g w_o out
    s_load_dwordx4 s[80:83], s[0:1], 64
    v_lshrrev_b32 v1, 6, v0
    v_and_b32 v0, 63, v0                     ; v0 = lane
    v_readfirstlane_b32 s{sW}, v1
    s_and_b32 s{sT0}, s2, 7
    s_lshr_b32 s{sT1}, s2, 3
    s_and_b32 s{sJ}, s{sT1}, 7               ; member
    s_lshr_b32 s{sKC}, s{sT1}, 3
    s_lshl_b32 s{sC}, s{sT0}, 2
    s_add_u32 s{sC}, s{sC}, s{sKC}
    s_lshr_b32 s{sB}, s{sC}, 4
    s_and_b32 s{sQ}, s{sC}, 15
    {self.rot_init()}
L_pc:
    s_cmp_lt_u32 s{sW}, 4
    s_cbranch_scc1 L_compute""")
    XM = {"B": (5, [0, 2, 4, 6, 1, 3, 5, 7]), "C": (3, [0, 4, 1, 5, 2, 6, 3, 7]), "A": (6, [0, 1, 2, 3, 4, 5, 6, 7]), "D": (7, [0, 1, 2, 3, 4, 5, 6, 7]),
          "E": (1, [0, 2, 4, 6, 1, 3, 5, 7]), "C2": (3, [0, 4, 2, 6, 1, 5, 3, 7])}
    def rot_init(self):
        if not self.xmode:
            return f"s_and_b32 s{sROT}, s{sJ}, 6\ns_add_u32 s{sROT}, s{sROT}, s{sT0}"
        return f"s_and_b32 s{sROT}, s{sJ}, {self.XM[self.xmode][0]}\ns_xor_b32 s{sROT}, s{sROT}, s{sT0}"
    def srd_first(self):
        self.a(f"""s_waitcnt lgkmcnt(0)
    s_mul_i32 s{sT0}, s{sB}, 4096000
    s_add_u32 s{SX}, s64, s{sT0}
    s_addc_u32 s{SX+1}, s65, 0
    s_mov_b32 s{SX+2}, 4096000
    s_mov_b32 s{SX+3}, 0x20000
    s_mov_b32 s{SW1}, s66
    s_mov_b32 s{SW1+1}, s67
    s_mov_b32 s{SW1+2}, 1572864
    s_mov_b32 s{SW1+3}, 0x20000""")
    def srd_rest(self):
        a = self.a
        for r, src, n in [(SW2, 68, 1572864), (SWF, 72, 524288), (SWG, 74, 524288), (SWO, 76, 524288), (SG, 70, 16384), (SDBG, 80, 256)]:
            a(f"s_mov_b32 s{r}, s{src}\ns_mov_b32 s{r+1}, s{src+1}\ns_mov_b32 s{r+2}, {n}\ns_mov_b32 s{r+3}, 0x20000")
        a(f"""s_mul_i32 s{sT0}, s{sB}, 1000
    s_mul_i32 s{sT1}, s{sQ}, 63
    s_add_u32 s{sT0}, s{sT0}, s{sT1}
    s_lshl_b32 s{sT0}, s{sT0}, 13
    s_add_u32 s{SOUT}, s78, s{sT0}
    s_addc_u32 s{SOUT+1}, s79, 0
    s_mov_b32 s{SOUT+2}, {63*8192}
    s_cmp_eq_u32 s{sQ}, 15
    s_cselect_b32 s{SOUT+2}, {55*8192}, s{SOUT+2}
    s_mov_b32 s{SOUT+3}, 0x20000
    s_lshl_b32 s{sT0}, s{sC}, 19
    s_add_u32 s{SWS}, s82, s{sT0}
    s_addc_u32 s{SWS+1}, s83, 0
    s_mov_b32 s{SWS+2}, 0x80000
    s_mov_b32 s{SWS+3}, 0x20000
    s_add_u32 s{SWT}, s82, 0x1000000
    s_addc_u32 s{SWT+1}, s83, 0
    s_mov_b32 s{SWT+2}, 0xc0000
    s_mov_b32 s{SWT+3}, 0x20000
    s_mov_b32 s{sROT2}, s{sJ}
    s_mov_b32 s{sGC1}, {fbits(GC1)}
    s_mov_b32 s{sGC1+1}, {fbits(GC1)}
    s_mov_b32 s{sTC}, {fbits(TC)}""")
        if self.stamps: a(f"s_mov_b32 s{STAMP0}, s90\ns_mov_b32 s{STAMP0+1}, s91")
    def slice_s(self, dst, which, shift):
        o = f"s_sub_u32 s{dst}, s{sJ}, s{sKC}\ns_add_u32 s{dst}, s{dst}, {self.jd2}" if which == 2 else f"s_add_u32 s{dst}, s{sJ}, {self.jd3}"
        return o + f"\ns_and_b32 s{dst}, s{dst}, 7" + (f"\ns_lshl_b32 s{dst}, s{dst}, {shift}" if shift else "")

    def stream16(self, groups, bar_at, drain, RA=3, RW=(3, 2), barhook=None, grouphook=None, hard=()):
        a = self.a
        xbase = lambda i: 64 + 8*(i % (RA+1))
        wslot = {}; todo = {}
        for i, g in enumerate(groups):
            if g["w"] and g["w"][0] not in wslot:
                b = 96 + 8*(len(wslot) % 3); wslot[g["w"][0]] = b
                for nt, (breg, off) in enumerate(g["w"][1]):
                    for e in range(2):
                        todo.setdefault(i - RW[nt], []).append((i, ("w", g["w"][0]), f"ds_read_b64_tr_b16 v[{b+4*nt+2*e}:{b+4*nt+2*e+1}], v{breg} offset:{off + 512*e}"))
            for xi, (areg, off) in enumerate(g["x"]):
                todo.setdefault(i - RA, []).append((i, ("x", i, xi), f"ds_read_b128 v[{xbase(i)+4*xi}:{xbase(i)+4*xi+3}], v{areg} offset:{off}"))
        q = []; bars = sorted(bar_at); done = set(); issued = []
        for u in hard:
            b = bars[u]
            for at in sorted(k for k in todo if isinstance(k, int) and k < b):
                mv = [it for it in todo[at] if it[0] >= b]; todo[at] = [it for it in todo[at] if it[0] < b]
                todo.setdefault(("pre", b), []).extend(mv)
        def issue(item):
            u = max((b for b in bars if b <= item[0]), default=None)
            if u is not None and u not in done:
                assert all(b in done for b in bars if b < u)
                assert not any(it[0] < u for lst in todo.values() for it in lst if it not in issued)
                done.add(u)
                if drain and u > 0: a("s_waitcnt lgkmcnt(0)")
                a("s_barrier")
                if barhook: barhook(bars.index(u))
            a(item[2]); q.append(item[1]); issued.append(item)
        for at in sorted(k for k in todo if isinstance(k, int) and k < 0):
            for item in sorted(todo[at], key=lambda t: t[0]): issue(item)
        for i, g in enumerate(groups):
            rd = sorted(todo.get(i, []), key=lambda t: t[0]); k = 0; plast = -1
            for item in todo.get(("pre", i), []): issue(item)
            if grouphook: grouphook(i)
            for m, (d, w, xi, first) in enumerate(g["mf"]):
                need = [("x", i, xi)] + ([("w", g["w"][0])] if g["w"] else [])
                last = max(j for j, t in enumerate(q) if t in need)
                if last > plast:
                    assert len(q) - 1 - last <= 15
                    a(f"s_waitcnt lgkmcnt({len(q) - 1 - last})"); plast = last
                if g["w"]: w = f"v[{wslot[g['w'][0]]+4*w}:{wslot[g['w'][0]]+4*w+3}]"
                x = xbase(i) + 4*xi
                a(f"v_mfma_f32_16x16x32_bf16 v[{d}:{d+3}], {w}, v[{x}:{x+3}], {'0' if first else f'v[{d}:{d+3}]'}")
                k2 = (len(rd)*(m+1) + 3)//4
                for item in rd[k:k2]: issue(item)
                k = k2

    def gelu_pack(self, acc, n, out):
        a = self.a; p = lambda r: f"v[{r}:{r+1}]"
        R = [acc+2*i for i in range(n//2)]; T = [96+2*i for i in range(n//2)]
        for r, t in zip(R, T): a(f"v_pk_mul_f32 {p(t)}, {p(r)}, {p(r)}")
        for r, t in zip(R, T): a(f"v_pk_fma_f32 {p(t)}, {p(t)}, s[{sGC1}:{sGC1+1}], v[24:25]")
        for r, t in zip(R, T): a(f"v_pk_mul_f32 {p(t)}, {p(t)}, {p(r)}")
        for i in range(n): a(f"v_exp_f32 v{96+i}, v{96+i}")
        for r, t in zip(R, T): a(f"v_pk_add_f32 {p(t)}, {p(t)}, 1.0 op_sel_hi:[1,0]")
        for i in range(n): a(f"v_rcp_f32 v{96+i}, v{96+i}")
        for r, t in zip(R, T): a(f"v_pk_mul_f32 {p(t)}, {p(t)}, {p(r)}")
        for i, t in enumerate(T): a(f"v_cvt_pk_bf16_f32 v{out+i}, v{t}, v{t+1}")
    def swap(self, out, nq):
        self.a("s_nop 1")
        for k in range(nq):
            for i in range(2): self.a(f"v_permlane16_swap_b32 v{out+4*k+i}, v{out+4*k+2+i}")
    def xstore(self, lines):
        a = self.a; S = a.label("L_xs"); D = a.label("L_xd")
        a(f"s_cmp_eq_u32 s{sFAST}, 0\ns_cbranch_scc1 {S}")
        for l in lines: a(l)
        a(f"{D}:")
        self.stubs += [f"{S}:"] + [l + " sc1" for l in lines] + [f"s_branch {D}"]
    def tile_store(self, base, voff, pk, steps):
        a = self.a
        a(f"s_lshr_b32 s{sT1}, s{sW}, 1\ns_lshl_b32 s{sT1}, s{sT1}, 12\ns_add_u32 s{sT1}, s{sT1}, {base}")
        self.xstore([f"buffer_store_dwordx4 v[{pk+4*i}:{pk+4*i+3}], v{voff}, {srd(SWS)}, s{sT1} offen offset:{st}" for i, st in enumerate(steps)])
    def set_flag(self, line, val=3, addr=2, younger=0):
        a = self.a
        a(f"s_waitcnt vmcnt({younger})\ns_mov_b64 exec, 1")
        self.xstore([f"buffer_store_dword v{val}, v{addr}, {srd(SWS)}, 0 offen offset:{line*128}"])
        a("s_mov_b64 exec, -1")
    def range_flag(self, dst, regs):
        a = self.a
        a(f"v_max3_f32 v{dst}, abs(v{regs[0]}), abs(v{regs[1]}), abs(v{regs[2]})")
        for i in range(3, len(regs)-1, 2): a(f"v_max3_f32 v{dst}, abs(v{regs[i]}), abs(v{regs[i+1]}), v{dst}")
        a(f"v_max_f32 v{dst}, abs(v{regs[-1]}), v{dst}\nv_cmp_lt_f32 vcc, 0x421c0000, v{dst}\ns_cmp_lg_u64 vcc, 0\ns_cselect_b32 s{sT0}, 3, 1\nv_mov_b32 v{dst}, s{sT0}")
    def flag_load(self, voff, line):
        return f"buffer_load_dword v4, v{voff}, {srd(SWS)}, 0 offen offset:{line*128} sc1"
    def poll(self, voff, line):
        a = self.a; L = a.label("L_poll"); D = a.label("L_got")
        a(f"""s_mov_b32 s{sCNT}, 0
{L}:
    {self.flag_load(voff, line)}
    s_add_u32 s{sCNT}, s{sCNT}, 1
    s_cmp_gt_u32 s{sCNT}, 200000
    s_cbranch_scc1 {D}
    s_waitcnt vmcnt(0)
    v_cmp_eq_u32 vcc, 0, v4
    s_cbranch_vccnz {L}
{D}:
    s_waitcnt vmcnt(0)""")
    def pubcheck(self, vp, vaddr, first_wait=True):
        a = self.a; L = a.label("L_pub"); D = a.label("L_pubd"); E = a.label("L_pube")
        a(f"s_mov_b32 s{sCNT}, 0\ns_lshl_b32 s{sT2}, s{sC}, 1\ns_add_u32 s{sT3}, s{sT2}, 1")
        if not first_wait: a(f"s_branch {E}")
        a(f"""{L}:
    s_waitcnt vmcnt(0)
{E}:
    v_and_b32 v4, 0x80808080, v{vp}
    v_cmp_ne_u32 vcc, 0x80808080, v4
    s_cbranch_vccz {D}
    s_add_u32 s{sCNT}, s{sCNT}, 1
    s_cmp_gt_u32 s{sCNT}, 200000
    s_cbranch_scc1 {D}
    buffer_load_dword v{vp}, v{vaddr}, {srd(SDBG)}, 0 offen sc1
    s_branch {L}
{D}:
    v_readlane_b32 s{sT0}, v{vp}, s{sT2}
    v_readlane_b32 s{sT1}, v{vp}, s{sT3}
    s_and_b32 s{sT2}, s{sT0}, 0xff
    s_mul_i32 s{sT2}, s{sT2}, 0x01010101
    s_xor_b32 s{sT0}, s{sT0}, s{sT2}
    s_xor_b32 s{sT1}, s{sT1}, s{sT2}
    s_or_b32 s{sT0}, s{sT0}, s{sT1}
    s_cmp_eq_u32 s{sT0}, 0
    s_cselect_b32 s{sFAST}, {0 if self.forceslow else 1}, 0
    s_cmp_eq_u32 s{sFAST}, 0
    s_cselect_b32 s{sFE}, {WS_FE}, {WS_H}""")

    def act_addrs(self, dst, rowbase_s, shift, add):
        a = self.a
        a(f"v_and_b32 v26, 15, v0")
        if shift: a(f"v_add_u32 v26, {shift}, v26")
        a(f"""v_and_b32 v27, 6, v26
    v_lshrrev_b32 v30, 4, v0
    v_xor_b32 v27, v27, v30
    v_lshlrev_b32 v27, 4, v27
    v_lshl_add_u32 v27, v26, 7, v27
    v_add_u32 v{dst}, s{rowbase_s}, v27""")
        if add: a(f"v_add_u32 v{dst}, {add}, v{dst}")
        a(f"v_xor_b32 v{dst+1}, 64, v{dst}")
    def compute_setup(self):
        a = self.a
        a("L_compute:")
        self.srd_first(); self.srd_rest()
        a(f"""
    s_lshl_b32 s{sT0}, s{sJ}, 2
    s_add_u32 s{sT0}, s{sT0}, s{sW}
    s_lshl_b32 s{sT0}, s{sT0}, 2
    s_add_u32 s{sT0}, s{sT0}, {WS_FL}
    v_mov_b32 v2, s{sT0}
    v_mov_b32 v3, 1
    s_getreg_b32 s{sT1}, hwreg(HW_REG_XCC_ID, 0, 4)
    s_or_b32 s{sT1}, s{sT1}, 0x80
    v_mov_b32 v120, s{sT1}
    s_lshl_b32 s{sT1}, s{sC}, 3
    s_add_u32 s{sT1}, s{sT1}, s{sJ}
    v_mov_b32 v121, s{sT1}
    s_cmp_lg_u32 s{sW}, 0
    s_cbranch_scc1 L_noclear
    v_lshrrev_b32 v4, 2, v0
    v_lshlrev_b32 v4, 7, v4
    v_and_b32 v5, 3, v0
    v_lshl_add_u32 v4, v5, 2, v4
    v_add_u32 v4, s{sT0}, v4
    v_mov_b32 v5, 0
    s_mov_b64 exec, 0xffffff
    buffer_store_dword v5, v4, {srd(SWS)}, 0 offen sc1
    s_mov_b64 exec, -1
    v_lshrrev_b32 v26, 3, v0
    v_and_b32 v27, 7, v0
    v_bfe_u32 v28, v0, 4, 1
    v_lshlrev_b32 v28, 2, v28
    v_xor_b32 v28, v28, v27
    v_lshlrev_b32 v28, 4, v28
    v_lshl_add_u32 v28, v26, 10, v28
    s_and_b32 s{sT1}, s2, 7
    s_lshl_b32 s{sT1}, s{sT1}, 7
    v_add_u32 v28, s{sT1}, v28
    v_add_u32 v29, 7168, v28
    s_mov_b32 m0, {PREP_AT}
    s_lshr_b32 s{sT1}, s2, 3
    s_lshl_b32 s{sT1}, s{sT1}, 14
    buffer_load_dwordx4 v28, {srd(SWO)}, s{sT1} offen lds
    buffer_load_dwordx4 v29, {srd(SWO)}, s{sT1} offen offset:1024 lds
    s_lshr_b32 s{sT1}, s2, 3
    s_and_b32 s{sT2}, s{sT1}, 3
    s_and_b32 s{sT3}, s2, 7
    s_lshl_b32 s{sT3}, s{sT3}, 2
    s_add_u32 s{sT2}, s{sT2}, s{sT3}
    s_lshr_b32 s{sT1}, s{sT1}, 2
    s_lshl_b32 s{sA1}, s{sT2}, 3
    s_add_u32 s{sA1}, s{sA1}, s{sT1}
    s_lshl_b32 s{sA1}, s{sA1}, 10
    s_add_u32 s{sA1}, s{sA1}, {GP_AT}
    v_lshrrev_b32 v28, 1, v0
    v_and_b32 v29, 1, v0
    v_lshlrev_b32 v29, 4, v29
    v_lshl_add_u32 v28, v28, 10, v29
    v_add_u32 v29, {32768-1024}, v28
    s_mov_b32 m0, {PREP_AT + 2048}
    s_lshl_b32 s{sT3}, s{sT1}, 16
    s_lshl_b32 s{sT2}, s{sT2}, 5
    s_add_u32 s{sT3}, s{sT3}, s{sT2}
    buffer_load_dwordx4 v28, {srd(SWG)}, s{sT3} offen lds
    buffer_load_dwordx4 v29, {srd(SWG)}, s{sT3} offen offset:1024 lds
    v_lshlrev_b32 v27, 4, v27
    v_lshl_add_u32 v28, v26, 10, v27
    v_add_u32 v29, 7168, v28
    s_mov_b32 m0, {PREP_AT + 4096}
    s_lshl_b32 s{sT3}, s{sT1}, 7
    buffer_load_dwordx4 v28, {srd(SG)}, s{sT3} offen lds
    buffer_load_dwordx4 v29, {srd(SG)}, s{sT3} offen offset:1024 lds
L_noclear:
    v_lshlrev_b32 v7, 2, v0
    s_cmp_lg_u32 s{sW}, 1
    s_cbranch_scc1 L_notouch
    s_getpc_b64 s[{sZM}:{sZM+1}]
L_pc0:
    s_sub_u32 s{sZM}, s{sZM}, L_pc0-L_pc
    s_subb_u32 s{sZM+1}, s{sZM+1}, 0
    s_lshr_b32 s{sT1}, s2, 3
    s_mul_i32 s{sT1}, s{sT1}, {CODE_LINES*128}
    v_lshlrev_b32 v26, 7, v0
    v_add_u32 v26, s{sT1}, v26
    v_cmp_gt_u32 vcc, L_end-L_pc, v26
    s_and_b32 vcc_lo, vcc_lo, {(1 << CODE_LINES)-1}
    s_mov_b32 vcc_hi, 0
    v_mov_b32 v27, s{sZM+1}
    s_and_saveexec_b64 s[84:85], vcc
    s_cbranch_execz L_notouch2
    v_add_co_u32 v26, vcc, s{sZM}, v26
    s_nop 1
    v_addc_co_u32 v27, vcc, 0, v27, vcc
    global_load_dword v31, v[26:27], off
L_notouch2:
    s_mov_b64 exec, -1
L_notouch:
    s_and_b32 s{sT0}, s{sW}, 1               ; wn
    s_lshr_b32 s{sT1}, s{sW}, 1              ; wm
    v_lshrrev_b32 v27, 4, v0                 ; g
    v_bfe_u32 v26, v0, 2, 2                  ; r4
    v_lshl_add_u32 v28, v27, 3, v26
    v_lshlrev_b32 v28, 7, v28
    v_lshrrev_b32 v26, 1, v26
    v_and_b32 v29, 1, v27
    v_lshl_add_u32 v26, v29, 1, v26
    s_lshl_b32 s{sT2}, s{sT0}, 1
    v_xor_b32 v26, s{sT2}, v26
    v_lshl_add_u32 v28, v26, 5, v28
    v_and_b32 v26, 3, v0
    v_lshl_add_u32 v16, v26, 3, v28
    v_xor_b32 v17, 32, v16
    v_add_u32 v18, 57344, v16
    v_add_u32 v19, 57344, v17
    v_and_b32 v26, 15, v0
    v_lshrrev_b32 v28, 1, v27
    v_lshl_add_u32 v27, v29, 1, v28
    s_lshl_b32 s{sT2}, s{sT0}, 2
    v_add_u32 v27, s{sT2}, v27
    v_lshrrev_b32 v29, 1, v26
    v_and_b32 v28, 6, v29
    v_xor_b32 v28, v28, v27
    v_lshlrev_b32 v28, 4, v28
    v_lshl_add_u32 v28, v29, 7, v28
    v_and_b32 v30, 1, v26
    v_lshl_add_u32 v28, v30, 13, v28
    s_lshl_b32 s{sT2}, s{sJ}, 14
    v_add_u32 v5, s{sT2}, v28
    v_lshlrev_b32 v28, 4, v27
    v_lshl_add_u32 v28, v26, 7, v28
    {self.slice_s(sT2, 3, 14)}
    v_add_u32 v23, s{sT2}, v28
    v_and_b32 v28, 6, v26
    v_xor_b32 v28, v28, v27
    v_lshlrev_b32 v28, 4, v28
    v_lshl_add_u32 v28, v26, 7, v28
    {self.slice_s(sT2, 2, 13)}
    v_add_u32 v22, s{sT2}, v28
    s_or_b32 s{sT2}, s{sQ}, s{sT1}
    s_cmp_eq_u32 s{sT2}, 0
    s_cselect_b32 s{sZM}, 0x00010001, 0
    s_mov_b32 s{sZM+1}, s{sZM}
    s_lshl_b32 s{sT2}, s{sT1}, 13
    v_mov_b32 v24, {fbits(GC0)}
    v_mov_b32 v25, {fbits(GC0)}""")
        self.act_addrs(8, sT2, 0, 0)
        self.act_addrs(10, sT2, 1, 0)
        for i in range(4): a(f"v_add_u32 v{12+i}, 57344, v{8+i}")
        a(f"""s_cmp_lg_u32 s{sW}, 0
    s_cbranch_scc1 L_noprep
    v_bfe_u32 v26, v0, 2, 2
    v_lshrrev_b32 v27, 5, v0
    v_lshl_add_u32 v27, v27, 3, v26
    v_lshlrev_b32 v27, 7, v27
    v_and_b32 v28, 1, v0
    v_lshlrev_b32 v28, 1, v28
    v_bfe_u32 v29, v0, 4, 1
    v_add_u32 v28, v28, v29
    v_bfe_u32 v29, v0, 3, 1
    v_lshlrev_b32 v29, 2, v29
    v_xor_b32 v28, v28, v29
    v_lshl_add_u32 v27, v28, 4, v27
    v_bfe_u32 v29, v0, 1, 1
    v_lshl_add_u32 v26, v29, 3, v27
    v_add_u32 v26, {PREP_AT}, v26
    v_xor_b32 v27, 64, v26
    s_and_b32 s{sT0}, s2, 7
    s_lshl_b32 s{sT0}, s{sT0}, 16
    s_lshr_b32 s{sT1}, s2, 3
    s_lshl_b32 s{sT1}, s{sT1}, 10
    s_add_u32 s{sT0}, s{sT0}, s{sT1}
    s_add_u32 s{sT1}, s{sT0}, 32768
    v_lshlrev_b32 v30, 4, v0
    v_lshrrev_b32 v28, 4, v0
    v_bfe_u32 v29, v0, 2, 2
    v_lshl_add_u32 v29, v28, 3, v29
    v_lshlrev_b32 v29, 5, v29
    v_and_b32 v31, 3, v0
    v_lshl_add_u32 v29, v31, 3, v29
    v_add_u32 v29, {PREP_AT + 2048}, v29
    v_and_b32 v31, 15, v0
    v_lshlrev_b32 v31, 7, v31
    v_lshl_add_u32 v28, v28, 4, v31
    v_add_u32 v28, {PREP_AT + 4096}, v28
    s_waitcnt vmcnt(0)
    ds_read_b64_tr_b16 v[40:41], v29
    ds_read_b64_tr_b16 v[42:43], v29 offset:128
    ds_read_b128 v[44:47], v28
    ds_read_b64_tr_b16 v[48:49], v29 offset:1024
    ds_read_b64_tr_b16 v[50:51], v29 offset:1152
    ds_read_b128 v[52:55], v28 offset:64
    ds_read_b64_tr_b16 v[32:33], v26
    ds_read_b64_tr_b16 v[34:35], v26 offset:512
    ds_read_b64_tr_b16 v[36:37], v27
    ds_read_b64_tr_b16 v[38:39], v27 offset:512
    s_waitcnt lgkmcnt(0)
    v_mfma_f32_16x16x32_bf16 v[56:59], v[40:43], v[44:47], 0
    v_mfma_f32_16x16x32_bf16 v[56:59], v[48:51], v[52:55], v[56:59]
    buffer_store_dwordx4 v[32:35], v30, {srd(SWT)}, s{sT0} offen sc1
    buffer_store_dwordx4 v[36:39], v30, {srd(SWT)}, s{sT1} offen sc1
    s_nop 7
    buffer_store_dwordx4 v[56:59], v30, {srd(SWT)}, s{sA1} offen sc1
L_noprep:""")
        if self.zfill == -1: self.zero_fill()
    def zero_fill(self):
        a = self.a; L = a.label("L_zf"); M = a.label("L_zg")
        a(f"s_cmp_lt_u32 s{sW}, 2\ns_cbranch_scc1 {L}\nv_lshlrev_b32 v30, 4, v0")
        a(f"s_cmp_eq_u32 s{sW}, 2\ns_cbranch_scc1 {M}\ns_lshl_b32 s{sT0}, s{sJ}, 14")
        for i in range(16):
            a(f"buffer_store_dwordx4 v[120:123], v30, {srd(SWS)}, s{sT0} offen offset:{(i % 4)*1024} sc1")
            if i % 4 == 3: a(f"s_add_u32 s{sT0}, s{sT0}, 4096")
        a(f"s_branch {L}\n{M}:\n{self.slice_s(sT0, 2, 13)}\ns_add_u32 s{sT0}, s{sT0}, {WS_F}")
        for i in range(8):
            a(f"buffer_store_dwordx4 v[120:123], v30, {srd(SWS)}, s{sT0} offen offset:{(i % 4)*1024} sc1")
            if i % 4 == 3: a(f"s_add_u32 s{sT0}, s{sT0}, 4096")
        for b in (WS_EB, WS_BB):
            a(f"s_lshl_b32 s{sT0}, s{sJ}, 11\ns_add_u32 s{sT0}, s{sT0}, {b}")
            for i in range(2): a(f"buffer_store_dwordx4 v[120:123], v30, {srd(SWS)}, s{sT0} offen offset:{i*1024} sc1")
        a(f"{L}:")
    def touch(self, w, sr, n, stride, chip, imm):
        a = self.a; L = a.label("L_tc"); n = -(-n*8//7)
        a(f"""s_cmp_lg_u32 s{sW}, {w}
    s_cbranch_scc1 {L}
    s_cmp_eq_u32 s{sJ}, 3
    s_cbranch_scc1 {L}
    s_mul_i32 s{sT0}, s{sC if chip else sKC}, 7
    s_add_u32 s{sT0}, s{sT0}, s{sJ}
    s_cmp_gt_u32 s{sJ}, 3
    s_subb_u32 s{sT0}, s{sT0}, 0
    s_mul_i32 s{sT0}, s{sT0}, {n*stride}
    v_lshlrev_b32 v30, {stride.bit_length()-1}, v0
    s_mov_b32 exec_lo, {hex((1 << min(n, 32))-1)}
    s_mov_b32 exec_hi, {hex((1 << max(n-32, 0))-1)}
    buffer_load_dword v31, v30, {srd(sr)}, s{sT0} offen offset:{imm}
    s_mov_b64 exec, -1
{L}:""")

    def conv1(self):
        a = self.a; groups = []; bar_at = set()
        for ch in range(8):
            par = ch % 2
            for (unit, taps) in (("A", (0, 2)), ("B", (1,))):
                bar_at.add(len(groups))
                for tap in taps:
                    for sk in range(2):
                        if unit == "A": xoff = 0; woff = 16384 + (tap//2)*8192; areg = (8 if tap == 0 else 10) + sk
                        else: xoff = 32768; woff = 32768 + 16384; areg = 8 + sk
                        for hf in range(2):
                            groups.append(dict(x=[(areg + 4*par, xoff + (2*hf + mt)*2048) for mt in range(2)],
                                               w=((ch, tap, sk), [(16 + 2*par + nt, woff + sk*4096) for nt in range(2)]),
                                               mf=[(32 + 16*hf + 4*m, m % 2, m//2, len(groups) < 2) for m in range(4)]))
        def hook(u):
            if u == 1:
                L = a.label("L_pb")
                a(f"s_cmp_lg_u32 s{sW}, 0\ns_cbranch_scc1 {L}\ns_mov_b64 exec, 1\ns_waitcnt vmcnt(0)\nbuffer_store_byte v120, v121, {srd(SDBG)}, 0 offen sc1\ns_mov_b64 exec, -1\n{L}:")
            if u == self.mallpf:
                self.touch(1, SW2, 48, 128, True, 0); self.touch(2, SWF, 16, 128, True, 0)
            if u == self.s3rest:
                self.touch(1, SW2, 48, 1024, False, 384); self.touch(3, SWF, 16, 1024, False, 384)
            if u == self.outtouch:
                L = a.label("L_ot")
                a(f"s_cmp_lg_u32 s{sW}, 3\ns_cbranch_scc1 {L}\ns_lshl_b32 s{sT0}, s{sJ}, 16\ns_mov_b64 exec, 1\nbuffer_load_dword v31, v7, {srd(SOUT)}, s{sT0} offen\ns_mov_b64 exec, -1\n{L}:")
            if u == self.zfill: self.zero_fill()
            if u == 11: a(f"buffer_load_dword v28, v7, {srd(SDBG)}, 0 offen sc1")
            if u == 14: self.pubcheck(28, 7)
        self.stream16(groups, bar_at, True, RA=self.c1ra, RW=self.c1rw, barhook=hook, hard=self.c1hard)
        self.stamp("c", "c1mfma")
        a("s_nop 7")
        for hf in range(2):
            pk = 112 + 8*hf
            self.gelu_pack(32+16*hf, 16, pk)
            self.swap(pk, 2)
            if hf == 0:
                a("s_nop 1")
                for i in range(4): a(f"v_cndmask_b32 v{pk+i}, v{pk+i}, 0, s[{sZM}:{sZM+1}]")
            self.tile_store(WS_H + hf*2048, 5, pk, (0, 1024))
        a(f"s_lshr_b32 s{sT1}, s{sW}, 1\ns_lshl_b32 s{sT1}, s{sT1}, 12\ns_add_u32 s{sT1}, s{sT1}, {C2_H[0]}\nv_and_b32 v26, 0x3fff, v5\nv_add_u32 v26, s{sT1}, v26")
        for i in range(4): a(f"ds_write_b128 v26, v[{112+4*i}:{115+4*i}] offset:{1024*i}")
        self.stamp("c", "xc1epi")
        self.set_flag(FL_H)
        self.stamp("c", "c1flag")

    def base3(self, lo, mid, hi, addr):
        if addr >= 114688: return hi, addr - 114688
        if addr >= MID: return mid, addr - MID
        return lo, addr
    def conv2(self):
        a = self.a
        a(f"s_lshr_b32 s{sT1}, s{sW}, 1\ns_lshl_b32 s{sT2}, s{sT1}, 12")
        self.act_addrs(8, sT2, 0, lE)
        self.act_addrs(10, sT2, 1, lE)
        for i in range(4): a(f"v_add_u32 v{12+i}, {lS-lE}, v{8+i}")
        for nt in range(2): a(f"v_add_u32 v{18+nt}, {MID}, v{16+nt}\nv_add_u32 v{20+nt}, 114688, v{16+nt}")
        a("s_waitcnt lgkmcnt(0)\ns_barrier")
        taps = (0, 2, 1)
        def wreg(n, e=None):
            f, r = ("a", 4*n) if n < 32 else ("v", 48+4*(n-32))
            return f"{f}[{r}:{r+3}]" if e is None else f"{f}[{r+2*e}:{r+2*e+1}]"
        groups = []; bar_at = set()
        for v in range(8):
            h, hr = (C2_H[v] - lE, 0) if C2_H[v] < lS else (C2_H[v] - lS, 4)
            breg, wb = self.base3(16, 18, 20, C2_W[v])
            if v: bar_at.add(len(groups))
            for i in range(6):
                tap, sk = taps[i//2], i % 2
                areg = (10 if tap == 2 else 8) + sk + hr; aoff = h + (8192 if tap == 1 else 0); boff = wb + tap*8192 + sk*4096
                x = [(areg, aoff + mt*2048) for mt in range(2)]
                if v < 3:
                    for nt in range(2):
                        for e in range(2): a(f"ds_read_b64_tr_b16 {wreg(12*v+2*i+nt, e)}, v{breg+nt} offset:{boff + 512*e}")
                    if i % 2 == 1: a("s_waitcnt lgkmcnt(4)")
                    groups.append(dict(x=x, w=None, mf=[(32+4*m, wreg(12*v+2*i + m % 2), m//2, not groups) for m in range(4)]))
                else:
                    groups.append(dict(x=x, w=((v, i), [(breg+nt, boff) for nt in range(2)]), mf=[(32+4*m, m % 2, m//2, False) for m in range(4)]))
        a("s_waitcnt lgkmcnt(0)")
        self.stream16(groups, bar_at, False, RA=self.c2ra, RW=self.c2rw)
        self.stamp("c", "c2mfma")
        a(f"""v_and_b32 v26, 15, v0
    v_lshrrev_b32 v27, 4, v0
    v_lshlrev_b32 v13, 8, v26
    v_lshl_add_u32 v13, v27, 4, v13
    s_lshl_b32 s{sT0}, s{sJ}, 11
    s_lshl_b32 s{sT1}, s{sW}, 6
    s_add_u32 s{sT0}, s{sT0}, s{sT1}
    v_add_u32 v13, s{sT0}, v13
    v_lshlrev_b32 v28, 4, v26
    v_lshl_add_u32 v28, v27, 8, v28
    s_lshl_b32 s{sT0}, s{sJ}, 2
    s_add_u32 s{sT0}, s{sT0}, s{sW}
    s_lshl_b32 s{sT0}, s{sT0}, 13
    s_lshl_b32 s{sT1}, s{sB}, 7
    s_add_u32 s{sT0}, s{sT0}, s{sT1}
    s_add_u32 s{sT0}, s{sT0}, {GP_AT}
    s_add_u32 s{sT1}, s{sT0}, 4096
    s_mov_b32 exec_lo, 0x00ff00ff
    s_mov_b32 exec_hi, 0x00ff00ff""")
        for p in range(8):
            a(f"buffer_load_dwordx4 v[{64+4*p}:{67+4*p}], v28, {srd(SWT)}, s{sT0 if p < 4 else sT1} offen offset:{(p % 4)*1024} sc1")
        a("s_mov_b64 exec, -1")
        for mt in range(2):
            self.gelu_pack(32+8*mt, 8, 120+4*mt)
            self.swap(120+4*mt, 1)
            self.tile_store(WS_F + mt*2048, 22, 120+4*mt, (0,))
        a(f"s_lshr_b32 s{sT1}, s{sW}, 1\ns_lshl_b32 s{sT1}, s{sT1}, 12\ns_add_u32 s{sT1}, s{sT1}, {F_AT[0]}\nv_and_b32 v30, 0x1fff, v22\nv_add_u32 v30, s{sT1}, v30")
        for i in range(2): a(f"ds_write_b128 v30, v[{120+4*i}:{123+4*i}] offset:{2048*i}")
        self.set_flag(FL_FA, younger=1)
        self.stamp("c", "c2flag")
        if self.yearly: a("s_waitcnt lgkmcnt(0)\ns_barrier")
        p = lambda r: f"v[{r}:{r+1}]"
        for st in (4, 8, 16):
            for r in range(64, 96, 2*st):
                for h in (0, 2): a(f"v_pk_add_f32 {p(r+h)}, {p(r+h)}, {p(r+st+h)}")
        self.set_flag(FL_FB, younger=1)
        if not self.yearly: a("s_waitcnt lgkmcnt(0)\ns_barrier")

    def ge_fe(self):
        a = self.a
        a(f"""v_cvt_pk_bf16_f32 v36, v64, v65
    v_cvt_pk_bf16_f32 v37, v66, v67
    v_lshlrev_b32 v32, 16, v36
    v_and_b32 v33, 0xffff0000, v36
    v_lshlrev_b32 v34, 16, v37
    v_and_b32 v35, 0xffff0000, v37
    s_mov_b32 exec_lo, 0x00ff00ff
    s_mov_b32 exec_hi, 0x00ff00ff""")
        self.range_flag(14, [32, 33, 34, 35])
        for i in range(4): a(f"v_mul_f32 v{32+i}, s{sTC}, v{32+i}")
        for i in range(4): a(f"v_exp_f32 v{40+i}, v{32+i}")
        a(f"s_mov_b32 s{sT1}, {WS_EB}\ns_mov_b32 s{sT2}, {WS_BB}")
        self.xstore([f"buffer_store_dwordx4 v[40:43], v13, {srd(SWS)}, s{sT1} offen", f"buffer_store_dwordx4 v[32:35], v13, {srd(SWS)}, s{sT2} offen"])
        a("s_mov_b64 exec, -1")
        a(f"s_lshr_b32 s{sT1}, s{sW}, 1\ns_lshl_b32 s{sT2}, s{sT1}, 12")
        self.act_addrs(8, sT2, 0, 0)
        for sk in range(2): a(f"v_add_u32 v{10+sk}, {MID}, v{8+sk}")
        self.stamp("c", "xge")
        for c in range(8):
            breg, wb = self.base3(16, 18, 20, WF_AT[c])
            for sk in range(2):
                for nt in range(2):
                    for e in range(2):
                        r = 16*c + 8*sk + 4*nt + 2*e
                        a(f"ds_read_b64_tr_b16 a[{r}:{r+1}], v{breg+nt} offset:{wb + sk*4096 + 512*e}")
            a("s_waitcnt lgkmcnt(4)")
        a("s_waitcnt lgkmcnt(0)")
        for mt in range(2):
            groups = []
            for c in range(8):
                areg, ab = self.base3(8, 10, None, F_AT[c])
                groups.append(dict(x=[(areg+sk, ab + mt*2048) for sk in range(2)], w=None,
                                   mf=[(32 + 8*mt + 4*(m % 2), f"a[{16*c+4*m}:{16*c+4*m+3}]", m//2, c == 0 and m < 2) for m in range(4)]))
            if mt == 0:
                self.stream16(groups, set(self.abars), False, RA=self.fra,
                              barhook=lambda i: (self.stamp("c", f"xfb{i}"), self.set_flag(FL_GE, val=14) if i == 0 else None))
                self.stamp("c", "femfma")
            else:
                self.stream16(groups, {1}, False, RA=self.fra,
                              grouphook=lambda i: (self.set_flag(FL_FEA, val=12), self.stamp("c", "feflag")) if i == self.flag_at else None)
            a("s_nop 7")
            for i in range(4): a(f"v_cvt_pk_bf16_f32 v{120+4*mt+i}, v{32+8*mt+2*i}, v{33+8*mt+2*i}")
            self.swap(120+4*mt, 1)
            self.tile_store(f"s{sFE}", 23, 120+4*mt, (2048*mt,))
            self.range_flag(12 if mt == 0 else 29, list(range(32+8*mt, 40+8*mt)))
        self.stamp("c", "xfeb")
        self.joint_setup()

    def dma(self, vreg, s, soff, imm, flags=""):
        if self.cur[0] in ("w2p", "wf") and len(self.q) > self.pace: self.a(f"s_waitcnt vmcnt({self.pace})")
        self.a(f"buffer_load_dwordx4 v{vreg}, {srd(s)}, {soff} offen" + (f" offset:{imm}" if imm else "") + f" {flags} lds")
        self.q.append(self.cur)
    def m0(self, const, sreg):
        self.a(f"s_add_u32 m0, s{sreg}, {const}")
    def wait_unit(self, *names):
        n = len(self.q) - 1 - max(i for i, x in enumerate(self.q) if x in names)
        assert n < 64
        self.a(f"s_waitcnt vmcnt({n})")
    def loader_setup(self):
        self.a(f"""s_and_b32 s{sLW}, s{sW}, 3
    s_lshl_b32 s{sM4}, s{sLW}, 12
    v_lshrrev_b32 v1, 3, v0
    v_and_b32 v2, 7, v0
    v_and_b32 v3, 6, v1
    v_xor_b32 v4, v2, v3
    v_lshlrev_b32 v4, 4, v4
    s_mul_i32 s{sT0}, s{sQ}, 252
    s_lshl_b32 s{sT1}, s{sLW}, 6
    s_add_u32 s{sT0}, s{sT0}, s{sT1}
    s_sub_u32 s{sT0}, s{sT0}, 3
    v_lshl_add_u32 v6, v1, 1, s{sT0}
    v_lshl_add_u32 v8, v6, 10, v4
    v_add_u32 v9, {15360}, v8
    v_add_u32 v10, {2*15360}, v8
    v_add_u32 v11, {3*15360}, v8
    v_add_u32 v12, 1024, v8
    v_add_u32 v13, 1024, v9
    v_add_u32 v14, 1024, v10
    v_add_u32 v15, 1024, v11
    v_bfrev_b32 v29, 1
    v_cmp_gt_i32 vcc, 0, v8
    v_cmp_gt_i32 s[84:85], 0, v12
    v_and_b32 v28, 2, v1
    v_xor_b32 v28, v28, v2
    v_cndmask_b32 v8, v8, v29, vcc
    v_cndmask_b32 v12, v12, v29, s[84:85]
    v_lshlrev_b32 v28, 4, v28
    v_lshl_add_u32 v28, v1, 10, v28
    s_lshl_b32 s{sT0}, s{sJ}, 7
    v_add_u32 v16, s{sT0}, v28
    v_xor_b32 v5, 64, v16
    v_add_u32 v17, 7168, v5
    v_add_u32 v18, {2*7168}, v16
    v_add_u32 v19, {3*7168}, v5
    s_lshr_b32 s{sT0}, s{sLW}, 1
    s_lshl_b32 s{sT0}, s{sT0}, 20
    s_and_b32 s{sT1}, s{sLW}, 1
    s_lshl_b32 s{sT1}, s{sT1}, 15
    s_add_u32 s{sA1}, s{sT0}, s{sT1}
    s_lshl_b32 s{sB1}, s{sLW}, 14
    s_lshl_b32 s{sM2}, s{sLW}, 11""")
        self.stamp2("xpre")
        self.srd_first()
        self.stamp2("xkarg")
        self.q = []
    def loader_setup2(self):
        self.a(f"""v_lshlrev_b32 v6, 4, v0
    v_add_u32 v20, s{sM4}, v6
    s_lshr_b32 s{sFO}, s{sLW}, 1
    s_lshl_b32 s{sFO}, s{sFO}, 12
    s_and_b32 s{sT0}, s{sLW}, 1
    s_lshl_b32 s{sT0}, s{sT0}, 10
    s_add_u32 s{sFO}, s{sFO}, s{sT0}
    v_add_u32 v24, s{sFO}, v6
    {self.slice_s(sT0, 3, 7)}
    v_add_u32 v25, s{sT0}, v28
    v_xor_b32 v26, 64, v25
    v_add_u32 v26, 7168, v26
    {self.slice_s(sT0, 2, 7)}
    v_add_u32 v21, s{sT0}, v28
    v_xor_b32 v22, 64, v21
    v_add_u32 v22, 7168, v22
    v_and_b32 v28, 31, v0
    v_lshlrev_b32 v28, 2, v28
    v_add_u32 v28, {WS_FL}, v28
    v_lshlrev_b32 v3, 7, v0
    s_lshl_b32 s{sT0}, s{sJ}, 14
    s_lshl_b32 s{sT1}, s{sLW}, 13
    s_add_u32 s{sT0}, s{sT0}, s{sT1}
    {self.slice_s(sT1, 2, 13)}
    s_add_u32 s{sT1}, s{sT1}, {WS_F}
    s_cmp_eq_u32 s{sLW}, 2
    s_cselect_b32 s{sT0}, s{sT1}, s{sT0}
    v_add_u32 v30, s{sT0}, v3
    s_cmp_lg_u32 s{sLW}, 3
    s_cbranch_scc1 L_tv
    v_and_b32 v30, 15, v0
    v_lshlrev_b32 v30, 7, v30
    v_lshrrev_b32 v29, 4, v0
    v_lshl_add_u32 v30, v29, 14, v30
    s_lshl_b32 s{sT1}, s{sJ}, 11
    s_add_u32 s{sT1}, s{sT1}, {WS_EB}
    v_add_u32 v30, s{sT1}, v30
    v_cmp_lt_u32 vcc, 31, v0
    v_add_u32 v29, {WS_FL - 32*128}, v3
    s_nop 0
    v_cndmask_b32 v30, v30, v29, vcc
L_tv:
    v_lshlrev_b32 v1, 2, v0""")
    def chunk_s(self, v, rot):
        self.a(f"s_add_u32 s{sT2}, s{rot}, {v}\ns_and_b32 s{sT2}, s{sT2}, 7")
    def c1_unit(self, u):
        a = self.a; ch, isB = divmod(u, 2); self.cur = ("c1", u)
        base = (C1_B if isB else C1_A)[ch % 2]
        if self.xmode: a(f"s_xor_b32 s{sT2}, s{sROT}, {self.XM[self.xmode][1][ch]}")
        else: self.chunk_s(ch, sROT)
        def xpart():
            self.m0(base, sM4)
            a(f"s_lshl_b32 s{sT0}, s{sT2}, 7")
            for i in range(4): self.dma((12 if isB else 8)+i, SX, f"s{sT0}", 1024*i)
        def wpart():
            a(f"s_lshl_b32 s{sT0}, s{sT2}, 16")
            self.m0(base + 16384, sM2 if isB else sM4)
            if isB: a(f"s_add_u32 s{sT0}, s{sT0}, s{sB1}\ns_add_u32 s{sT0}, s{sT0}, 524288")
            else: a(f"s_add_u32 s{sT0}, s{sT0}, s{sA1}")
            for i in range(2 if isB else 4): self.dma(16+i, SW1, f"s{sT0}", 1024*i)
        for i in dict(self.w2t).get(u, ()):
            a(f"s_lshr_b32 s{sT0}, s2, 3\ns_mul_i32 s{sT0}, s{sT0}, 49152\ns_add_u32 s{sT0}, s{sT0}, s{sM2}\ns_add_u32 s{sT0}, s{sT0}, {i*8192}")
            a(f"s_mov_b64 exec, 0xffff\nbuffer_load_dword v31, v3, {srd(SW2)}, s{sT0} offen\ns_mov_b64 exec, -1")
            self.q.append(("touch", 1))
        if isB: wpart(); xpart()
        else: xpart(); wpart()
    def w2_unit(self, v, pre=False):
        a = self.a; self.cur = ("w2p" if pre else "w2", v)
        self.chunk_s(v, sROT2)
        a(f"s_lshl_b32 s{sT0}, s{sT2}, 16\ns_add_u32 s{sT0}, s{sT0}, s{sB1}")
        for tap in range(3):
            self.m0(C2_W[v] + tap*8192, sM2)
            a(f"s_add_u32 s{sT0}, s{sT0}, 524288" if tap else "s_nop 0")
            for i in range(2): self.dma(21+i, SW2, f"s{sT0}", 1024*i)
    def h_unit(self, v):
        a = self.a; self.cur = ("h", v)
        self.chunk_s(v, sROT2)
        self.m0(C2_H[v], sM4)
        a(f"s_lshl_b32 s{sT0}, s{sT2}, 14")
        for i in range(4): self.dma(20, SWS, f"s{sT0}", 1024*i, "sc1")
    def wf_unit(self, c, paced):
        a = self.a; self.cur = ("wf" if paced else "wfn", c)
        self.chunk_s(c, sROT2)
        self.m0(WF_AT[c], sM2)
        a(f"s_lshl_b32 s{sT0}, s{sT2}, 16\ns_add_u32 s{sT0}, s{sT0}, s{sB1}")
        for i in range(2): self.dma(25+i, SWF, f"s{sT0}", 1024*i)
    def f_unit(self, c, part):
        a = self.a; self.cur = ("f", c, part)
        self.chunk_s(c, sROT2)
        self.m0(F_AT[c], sFO)
        a(f"s_lshl_b32 s{sT0}, s{sT2}, 13\ns_add_u32 s{sT0}, s{sT0}, {WS_F}")
        self.dma(24, SWS, f"s{sT0}", 2048*part, "sc1")

    def smem_touch(self, u):
        a = self.a; per, u0, jobs = self.smem
        items = []
        for j in jobs:
            if j == "w2": items += [("c", SW2, 6144, 1536, i*64) for i in range(24)]
            if j == "wf": items += [("c", SWF, 2048, 512, i*64) for i in range(8)]
            if j == "s2": items += [("g", SW2, 49152, 12288, (i//2)*1024 + 384 + (i % 2)*64) for i in range(24)]
            if j == "sf": items += [("g", SWF, 16384, 4096, (i//2)*1024 + 384 + (i % 2)*64) for i in range(8)]
        if u < u0: return
        prev = None
        for kind, sr, share, part, off in items[(u-u0)*per:(u-u0+1)*per]:
            if (kind, sr) != prev:
                a((f"s_mul_i32 s86, s2, {share}" if kind == "c" else f"s_lshr_b32 s86, s2, 3\ns_mul_i32 s86, s86, {share}") + f"\ns_mul_i32 s87, s{sLW}, {part}\ns_add_u32 s86, s86, s87")
                prev = (kind, sr)
            a(f"s_add_u32 s87, s86, {off}\ns_buffer_load_dword s88, {srd(sr)}, s87")
    def loader(self):
        a = self.a
        self.loader_setup()
        for u in range(2): self.c1_unit(u)
        self.stamp2("xiss")
        self.srd_rest()
        for i, n in enumerate(self.early):
            k = self.nst["l"]; self.nst["l"] += 1; self.names["l"].append(n); a(f"s_waitcnt lgkmcnt(0)\ns_mov_b32 s{STAMP0+2*k}, s{84+2*i}")
        self.loader_setup2()
        for u in range(2, 4): self.c1_unit(u)
        nxt = 4
        for u in range(16):
            self.wait_unit(("c1", u)); a("s_barrier")
            self.stamp("l", f"c1u{u}" if u in (0, 15) else f"xc1u{u}")
            if u == 11: a(f"buffer_load_dword v2, v1, {srd(SDBG)}, 0 offen sc1"); self.q.append(("pub", 0))
            if u == 13: self.pubcheck(2, 1, first_wait=False)
            while nxt <= min(u + (3 if u < self.lasw else 2), 15): self.c1_unit(nxt); nxt += 1
            for v in dict(self.w2early).get(u, ()): self.w2_unit(v)
            if self.smem: self.smem_touch(u)
            if u == self.ptu:
                if self.ftu is not None: a(f"s_cmp_eq_u32 s{sLW}, 2\ns_cselect_b32 exec_hi, 0, -1\ns_cselect_b32 exec_lo, 1, -1")
                a(f"s_cmp_eq_u32 s{sLW}, 3\ns_cselect_b32 exec_hi, 0x3f, exec_hi\ns_cselect_b32 exec_lo, {0xffff if self.nobb else -1}, exec_lo\nbuffer_load_dword v31, v30, {srd(SWS)}, 0 offen sc1\ns_mov_b64 exec, -1")
                self.q.append(("touch", 0))
        if self.smem: a("s_waitcnt lgkmcnt(0)")
        early = [v for _, vs in self.w2early for v in vs]
        for v in range(self.w2pre):
            if v not in early: self.w2_unit(v, True)
        self.wait_unit(("w2p", 2))
        self.stamp("l", "xw2l")
        a("s_barrier")
        self.stamp("l", "xX")
        self.poll(28, FL_H); self.q = []
        self.stamp("l", "sync1")
        self.h_unit(1); self.h_unit(2)
        if self.w2pre == 3: self.w2_unit(3)
        nwt = 0
        def wt(n, pace):
            nonlocal nwt
            while nwt < n:
                if pace and len(self.q) > pace: a(f"s_waitcnt vmcnt({pace})")
                for ins in self.wt_load(nwt): a(ins)
                self.q.append(("wt", nwt)); nwt += 1
        for v in range(1, 8):
            self.wait_unit(("h", v), ("w2", v)); a("s_barrier")
            self.stamp("l", {1: "c2v0", 7: "c2v7"}.get(v, f"xc2v{v}"))
            if v < 6:
                for it in self.c2plan[v-1].split(): (self.h_unit if it[0] == "h" else self.w2_unit)(int(it[1]))
            if v == self.ftu:
                a(f"s_cmp_eq_u32 s{sLW}, 2\ns_cselect_b32 exec_hi, -1, 0\ns_cselect_b32 exec_lo, -1, 1\nbuffer_load_dword v31, v30, {srd(SWS)}, 0 offen sc1\ns_mov_b64 exec, -1")
                self.q.append(("touch", 2))
            if v == self.js_at: self.joint_setup()
            if v == 6:
                a(self.slice_s(sROT2, 2, 0))
                for c in range(3): self.wf_unit(c, False)
            if v == 7:
                for c in range(3, 8): self.wf_unit(c, True)
        wt(self.wt_w2, self.pace)
        self.wait_unit(("wf", 7))
        self.stamp("l", "xwfl")
        a("s_barrier")
        self.stamp("l", "xY")
        self.poll(28, FL_FA); self.q = []
        self.stamp("l", "sync2")
        b0, b1 = self.abars
        for c in range(1, b1): self.f_unit(c, 0)
        a(self.flag_load(28, FL_FB)); self.q.append(("fb", 0))
        for c in range(b1, 8): self.f_unit(c, 0)
        self.wait_unit(("fb", 0)); a("s_barrier")
        self.stamp("l", "xfb0")
        a(f"v_cmp_eq_u32 vcc, {1 if self.forcerare else 0}, v4\ns_cbranch_vccnz L_fb_late")
        for c in range(1, 8): self.f_unit(c, 1)
        self.wait_unit(("f", 7, 0)); a("s_barrier\nL_fb_join:")
        main = self.a; self.a = Asm(); self.a.nlab = 9000; q = self.q
        self.a("L_fb_late:\ns_waitcnt vmcnt(0)\ns_barrier")
        self.poll(28, FL_FB)
        for c in range(1, 8): self.f_unit(c, 1)
        self.a("s_branch L_fb_join")
        self.stubs += self.a.lines; self.a = main; self.q = q[:-7]
        wt(self.wt_w2 + self.wt_early, 0)
        self.wait_unit(("f", 7, 1)); a("s_barrier")
        self.stamp("l", "xfb2")
        self.poll(28, FL_GE)
        a(f"v_lshlrev_b32 v29, 4, v0\ns_add_u32 m0, s{sM4}, {EB_AT}\ns_add_u32 s{sT0}, s{sM4}, {WS_EB}")
        self.q = []; self.cur = ("eb", 0)
        for i in range(4): self.dma(29, SWS, f"s{sT0}", 1024*i, "sc1")
        wt(min(32, self.wt_w2 + self.wt_early + self.wt_l2), self.pace3)
        self.stamp("l", "xwti")
        self.nwt_l = nwt
        self.n_after_eb = len(self.q) - 4

    FER = [8, 10, 24, 26]
    def joint_setup(self):
        self.a(f"""v_mov_b32 v15, v2
    v_and_b32 v1, 31, v0
    v_mul_u32_u24 v1, 1040, v1
    v_lshrrev_b32 v2, 5, v0
    v_lshl_add_u32 v1, v2, 4, v1             ; A read
    s_and_b32 s{sT2}, s{sJ}, 1
    s_lshl_b32 s{sT0}, s{sT2}, 3
    s_add_u32 s{sT0}, s{sT0}, s{sW}
    s_lshl_b32 s{sT0}, s{sT0}, 15
    v_lshlrev_b32 v12, 4, v0
    v_add_u32 v12, s{sT0}, v12
    s_lshl_b32 s{sT2}, s{sT2}, 9
    v_mov_b32 v11, 8320
    v_lshrrev_b32 v8, 4, v0
    v_and_b32 v9, 15, v0
    s_lshl_b32 s{sT0}, s{sW}, 7
    v_lshl_add_u32 v10, v9, 3, s{sT0}
    s_lshl_b32 s{sT1}, s{sW}, 11
    v_lshl_add_u32 v13, v9, 4, s{sT1}
    s_lshl_b32 s{sWR}, s{sKC}, 2
    s_lshr_b32 s{sT1}, s{sJ}, 1              ; pair
    s_add_u32 s{sWR}, s{sWR}, s{sT1}
    s_and_b32 s{sWR}, s{sWR}, 14
    s_lshl_b32 s{sT3}, s{sWR}, 6
    v_subrev_u32 v2, s{sT3}, v10
    v_and_b32 v2, 1023, v2
    v_mad_u32_u24 v2, v8, v11, v2            ; A write
    s_lshl_b32 s{sT3}, s{sT1}, 9
    s_lshl_b32 s{sT0}, s{sW}, 14
    s_add_u32 s{sT3}, s{sT3}, s{sT0}
    v_lshlrev_b32 v3, 3, v9
    v_lshl_add_u32 v3, v8, 7, v3
    v_add_u32 v3, s{sT3}, v3
    v_lshlrev_b32 v5, 10, v9
    v_lshl_add_u32 v5, v8, 4, v5
    s_lshl_b32 s{sT1}, s{sT1}, 15
    s_add_u32 s{sT1}, s{sT1}, s{sT2}
    s_lshl_b32 s{sT2}, s{sW}, 6
    s_add_u32 s{sT1}, s{sT1}, s{sT2}
    v_add_u32 v5, s{sT1}, v5
    s_lshl_b32 s{sWR}, s{sWR}, 11
    v_lshlrev_b32 v7, 2, v0
    v_add_u32 v7, {WS_FL}, v7
    v_and_b32 v28, 31, v0
    v_lshlrev_b32 v28, 2, v28
    v_add_u32 v28, {WS_FL}, v28""")
    def wt_load(self, i):
        return [f"buffer_load_dwordx4 a[{4*i}:{4*i+3}], v12, {srd(SWT)}, s{sWR} offen offset:{(i % 4)*1024} sc1"] + \
               ([f"s_add_u32 s{sWR}, s{sWR}, 4096", f"s_and_b32 s{sWR}, s{sWR}, 0x7fff"] if i % 4 == 3 else [])
    def fe_load(self, ps):
        return f"s_add_u32 s{sT2}, s{sFE}, {PASS_ROW[ps]*128}\nbuffer_load_dwordx2 v[{self.FER[ps]}:{self.FER[ps]+1}], v3, {srd(SWS)}, s{sT2} offen sc1"
    def tanh_ops(self, ps, form):
        p = lambda r: f"v[{r}:{r+1}]"
        f0, f1 = self.FER[ps], self.FER[ps]+1
        o = [f"v_lshlrev_b32 v112, 16, v{f0}", f"v_and_b32 v113, 0xffff0000, v{f0}",
             f"v_lshlrev_b32 v114, 16, v{f1}", f"v_and_b32 v115, 0xffff0000, v{f1}"]
        o += [f"v_mul_f32 v{112+i}, s{sTC}, v{112+i}" for i in range(4)]
        if form != "slow": o += [f"v_exp_f32 v{112+i}, v{112+i}" for i in range(4)]
        for u in range(8):
            t = (116, 20)[u % 2]; e = 80 + 4*u; d = 16 + 2*(u % 2)
            if form == "slow":
                o += [f"v_add_f32 v{t+i}, v{112+i}, v{e+i}" for i in range(4)]
                o += [f"v_exp_f32 v{t+i}, v{t+i}" for i in range(4)]
                o += [f"v_add_f32 v{t+i}, 1.0, v{t+i}" for i in range(4)]
            elif form == "pk": o += [f"v_pk_fma_f32 {p(t+i)}, {p(112+i)}, {p(e+i)}, 1.0 op_sel_hi:[1,1,0]" for i in (0, 2)]
            else: o += [f"v_fma_f32 v{t+i}, v{112+i}, v{e+i}, 1.0" for i in range(4)]
            o += [f"v_rcp_f32 v{t+i}, v{t+i}" for i in range(4)]
            if form == "pk": o += [f"v_pk_fma_f32 {p(t+i)}, {p(t+i)}, -2.0, 1.0 op_sel_hi:[1,0,0]" for i in (0, 2)]
            else: o += [f"v_fma_f32 v{t+i}, v{t+i}, -2.0, 1.0" for i in range(4)]
            o += [f"v_cvt_pk_bf16_f32 v{d}, v{t}, v{t+1}", f"v_cvt_pk_bf16_f32 v{d+1}, v{t+2}, v{t+3}"]
            o += [f"ds_write_b64 v2, v[{d}:{d+1}] offset:{JA[ps % 2] + u*1040}"]
        return o
    def out_ops(self, ps):
        acc = 32 + 16*(ps % 2); o0 = PASS_ROW[ps]*8192
        o = [f"v_cvt_pk_bf16_f32 v{120+i}, v{acc+2*i}, v{acc+2*i+1}" for i in range(8)]
        o += [f"v_permlane16_swap_b32 v{120+i}, v{124+i}" for i in range(4)]
        o += [f"s_mov_b32 s{sT0}, {o0}", f"buffer_store_dwordx4 v[120:123], v5, {srd(SOUT)}, s{sT0} offen sc1",
              f"s_mov_b32 s{sT1}, {o0+16384}", f"buffer_store_dwordx4 v[124:127], v5, {srd(SOUT)}, s{sT1} offen sc1"]
        return o
    def jpass(self, ps, form, wt_from=32, role=None):
        a = self.a; acc = 32 + 16*(ps % 2); R = self.jr
        ring = lambda s: 64 + 4*(s % 4)
        rd = lambda s: f"ds_read_b128 v[{ring(s)}:{ring(s)+3}], v1 offset:{JA[ps % 2] + 32*s}"
        out = self.out_ops(ps-1) if ps else []
        tan = self.tanh_ops(ps+1, form) if ps < 3 else []
        start = {i: self.o_at for i in range(8)} if ps else {}
        if ps == 1: start.update({len(out)+i: self.t2_at for i in range(4)})
        sched.TRANS_D, sched.PLAIN_D, sched.CVT = self.td, self.pd, self.cvt
        gaps = sched.schedule(out + tan, 32, self.budget + (12 if form == "slow" else 0), start=start, maxins=self.maxins if form != "slow" else 12)
        sched.TRANS_D, sched.PLAIN_D = 1, 0
        q = []; issued = wt_from; waited = -1; nst = 0; few = ps != 1
        before = after = []
        if role and self.phase and tan:
            fl = self.flat(out + tan); n = self.phase
            inner, after = (fl[:n], fl[n:]) if role == "c" else (fl[-n:], [])
            before = fl[:-n] if role == "l" else []
            lo = 2 if role == "c" else 0
            gaps = [inner[n*(s-lo)//(32-lo):n*(s-lo+1)//(32-lo)] if s >= lo else [] for s in range(32)]
            if before and ps: a("s_nop 7\ns_nop 1")
            for ins in before:
                if not few and ins in tan[:4]: a(f"s_waitcnt vmcnt({nst})"); few = True
                a(ins)
                if ins.startswith("buffer_store"): nst += 1
            a("s_waitcnt lgkmcnt(0)\ns_setprio 1" if before else "s_setprio 1")
        for s in range(R): a(rd(s)); q.append(("r", s))
        for s in range(32):
            n = len(q) - 1 - q.index(("r", s))
            vm = ""
            if wt_from < 32 and waited < s and s <= self.chk_at[1]:
                assert issued > s
                upto = min(s + 1, issued - 1) if s % 2 == 0 else s
                vm = f"vmcnt({issued - 1 - upto + (s >= self.chk_at[0])}) "; waited = upto
            a(f"s_waitcnt {vm}lgkmcnt({n})")
            a(f"v_mfma_f32_32x32x16_bf16 v[{acc}:{acc+15}], a[{4*s}:{4*s+3}], v[{ring(s)}:{ring(s)+3}], {'0' if s == 0 else f'v[{acc}:{acc+15}]'}")
            if self.rdpos == 0 and s + R < 32: a(rd(s+R)); q.append(("r", s+R))
            for ins in gaps[s]:
                if not few and ins in tan[:4]: a(f"s_waitcnt vmcnt({nst})"); few = True
                a(ins)
                if ins.startswith("ds_"): q.append(("w", 0))
                if ins.startswith("buffer_store"): nst += 1
            if self.rdpos == 1 and s + R < 32: a(rd(s+R)); q.append(("r", s+R))
            while issued < 32 and (issued - wt_from) * self.chk_at[0] < (s + 1) * (32 - wt_from):
                for ins in self.wt_load(issued): a(ins)
                issued += 1
            if ps == 0 and s == self.chk_at[0] - 1:
                assert issued == 32
                a(self.flag_load(28, FL_FEB))
            if ps == 0 and s == self.chk_at[1]:
                L = a.label("L_fl"); D = a.label("L_fd")
                a(f"s_waitcnt vmcnt(0)\nv_cmp_eq_u32 vcc, {1 if self.forcerare else 0}, v4\ns_cbranch_vccnz {L}\n{D}:")
                a(f"v_cmp_lt_u32 vcc, 1, v4\ns_cmp_lg_u64 vcc, 0\ns_cselect_b32 s{sSLOWT}, 1, {1 if self.forceslowt == 2 else 0}")
                a(self.fe_load(2)); a(self.fe_load(3))
                main = self.a; self.a = Asm(); self.a.nlab = main.nlab + 5000
                self.a(f"{L}:"); self.poll(28, FL_FEB); self.a(f"s_branch {D}")
                self.stubs += self.a.lines; self.a = main
        if role and self.phase and tan:
            a("s_setprio 0")
            for ins in after: a(ins)
        a("s_waitcnt lgkmcnt(0)")
    def flat(self, ops):
        return [i for g in sched.schedule(ops, 1, 0) for i in g]
    def bb_loads(self):
        self.a("s_waitcnt lgkmcnt(0)")
        for u in range(8):
            self.a(f"s_mov_b32 s{sT0}, {WS_BB + u*256}\nbuffer_load_dwordx4 v[{80+4*u}:{83+4*u}], v13, {srd(SWS)}, s{sT0} offen sc1")
        self.a("s_waitcnt vmcnt(0)")
    def joint(self):
        a = self.a
        for role in "cl":
            a(f"L_joint_{role}:\nv_mov_b32 v30, {lS1}")
            if role == "c":
                L = a.label("L_np"); a(f"s_cmp_lg_u32 s{sW}, 0\ns_cbranch_scc1 {L}")
                self.poll(7, FL_FEA)
                a(f"v_cmp_lt_u32 vcc, 1, v4\ns_cmp_lg_u64 vcc, 0\ns_cselect_b32 s{sT0}, 1, {1 if self.forceslowt == 1 else 0}\nv_mov_b32 v4, s{sT0}\nds_write_b32 v30, v4\ns_waitcnt lgkmcnt(0)\n{L}:")
            else: a(f"s_waitcnt vmcnt({self.n_after_eb})")
            self.stamp(role, "sync3")
            a("s_barrier")
            a(self.fe_load(0)); a(f"ds_read_b32 v4, v30\nv_add_u32 v14, {EB_AT}, v13")
            for u in range(8): a(f"ds_read_b128 v[{80+4*u}:{83+4*u}], v14 offset:{u*256}")
            a(f"s_waitcnt lgkmcnt(8)\nv_readfirstlane_b32 s{sSLOWT}, v4\ns_waitcnt vmcnt(0)")
            if role == "c": self.set_flag(FL_FEB, val=29, addr=15)
            a(self.fe_load(1))
            a(f"s_cmp_lg_u32 s{sSLOWT}, 0\ns_cbranch_scc1 L_jslow_{role}\ns_waitcnt lgkmcnt(0)")
            self.stamp(role, "jpre")
            ops = self.flat(self.tanh_ops(0, "pk"))
            nwt, n0 = (0, self.wt_t0) if role == "c" else (self.nwt_l, min(self.wt_t0l, 32 - self.nwt_l))
            for i, ins in enumerate(ops):
                a(ins)
                if n0 and (i+1)*n0//len(ops) > i*n0//len(ops):
                    for l in self.wt_load(nwt): a(l)
                    nwt += 1
            a(f"s_waitcnt vmcnt({n0}) lgkmcnt(0)\ns_barrier")
            self.stamp(role, "t0")
            self.jpass(0, "fast", nwt, role if self.phase0 else None)
            a(f"s_cmp_lg_u32 s{sSLOWT}, 0\ns_cbranch_scc1 L_jslow_b\ns_barrier")
            self.stamp(role, "p0")
            if self.phase:
                for ps in (1, 2):
                    if ps == 2 and role == "c": self.wb()
                    self.jpass(ps, "fast", role=role); a("s_barrier")
                    self.stamp(role, f"xp{ps}")
            if role == "c": a("s_branch L_p1")
        a("L_p1:")
        for ps in range(3 if self.phase else 1, 4):
            if ps == 2: self.wb()
            self.jpass(ps, "fast")
            if ps < 3: a("s_barrier")
            self.stamp("j", f"xp{ps}")
        a("s_nop 7\ns_nop 3")
        for ins in self.flat(self.out_ops(3)): a(ins)
        a("s_branch L_fin" if self.stamps else "s_endpgm")
        a("L_jslow_b:")
        self.bb_loads()
        a("s_barrier\ns_branch L_jslow_p1")
        a("L_jslow_c:")
        for i in range(32):
            if i == self.nwt_l: a("L_jslow_l:")
            for ins in self.wt_load(i): a(ins)
        assert self.nwt_l < 32 and self.nwt_l % 4 == self.nwt_l % 4
        self.bb_loads()
        for ins in self.flat(self.tanh_ops(0, "slow")): a(ins)
        a("s_waitcnt lgkmcnt(0)\ns_barrier")
        for ps in range(4):
            if ps == 1: a("L_jslow_p1:")
            self.jpass(ps, "slow")
            if ps < 3: a("s_barrier")
        a("s_nop 7\ns_nop 3")
        for ins in self.flat(self.out_ops(3)): a(ins)
        a("s_branch L_fin" if self.stamps else "s_endpgm")
        for l in self.stubs: a(l)
        a("L_fin:")
        self.stamp("j", "jend")

    def wb(self):
        a = self.a; L = a.label("L_nwb")
        a(f"s_or_b32 s{sT0}, s{sJ}, s{sW}\ns_or_b32 s{sT0}, s{sT0}, s{sKC}\ns_cbranch_scc1 {L}\ns_cmp_eq_u32 s{sFAST}, 0\ns_cbranch_scc1 {L}\nbuffer_wbl2 sc1\n{L}:")

    def finish(self):
        a = self.a
        if self.stamps:
            a("s_waitcnt vmcnt(0)")
            self.stamp("j", "drain")
            a("s_waitcnt lgkmcnt(0)")
            if self.probe is not None:
                n0, n1, K = self.probe
                i0, i1, ie = (self.names["l"].index(n) for n in (n0, n1, "drain"))
                a(f"""s_cmp_lt_u32 s{sW}, 4
    s_cbranch_scc1 L_end
    s_sub_u32 s{sT0}, s{STAMP0+2*i1}, s{STAMP0+2*i0}
    s_mul_i32 s{sT0}, s{sT0}, {K}
    s_min_u32 s{sT0}, s{sT0}, 100000
L_spin:
    s_memrealtime s[52:53]
    s_waitcnt lgkmcnt(0)
    s_sub_u32 s52, s52, s{STAMP0+2*ie}
    s_cmp_lt_u32 s52, s{sT0}
    s_cbranch_scc1 L_spin""")
            else:
                for i in range(13): a(f"v_mov_b32 v{16+i}, s{STAMP0+2*i}")
                a(f"""s_lshl_b32 s{sT0}, s{sJ}, 3
    s_add_u32 s{sT0}, s{sT0}, s{sW}
    s_lshl_b32 s{sT0}, s{sT0}, 6
    s_add_u32 s{sT0}, s{sT0}, {WS_STAMP}
    v_mov_b32 v1, s{sT0}
    s_mov_b64 exec, 1""")
                for i in range(4): a(f"buffer_store_dwordx4 v[{16+4*i}:{19+4*i}], v1, {srd(SWS)}, 0 offen offset:{16*i}")
        a("L_end:\ns_endpgm")

    def build(self):
        a = self.a
        a(HEADER.rstrip("\n"))
        a(header([(None, 256, 512, 163840)]))
        a(kernel_begin(KN))
        self.prologue()
        self.loader()
        a("s_branch L_joint_l")
        self.compute_setup()
        self.conv1(); self.conv2(); self.ge_fe()
        n = max(self.nst.values())
        for r in "cl":
            while len(self.names[r]) < n: self.names[r].append("-")
            self.nst[r] = n
        self.joint()
        self.finish()
        a(descriptor(KN, 256, 128))
        return self.a.text()

if __name__ == "__main__":
    out = sys.argv[1] if len(sys.argv) > 1 else "k12.s"
    g = Gen(stamps=("stamps" in sys.argv))
    open(out, "w").write(g.build())
    print(g.names)
```
